```python
import torch

def _softmax(x, axis=-1):
    return torch.softmax(x, dim=axis)
def _gelu(x):
    return torch.nn.functional.gelu(x, approximate="tanh")
def _silu(x):
    return torch.nn.functional.silu(x)
def _sigmoid(x):
    return torch.sigmoid(x)
def _layernorm(x, axis=-1, eps=1e-5):
    m = x.mean(dim=axis, keepdim=True)
    v = x.var(dim=axis, keepdim=True, unbiased=False)
    return (x - m) / torch.sqrt(v + eps)
def _scatter_add(tgt, idx, src, axis=0):
    return tgt.clone().index_add_(axis, idx, src)
def _segment_sum(src, seg, n):
    out = torch.zeros((n,) + src.shape[1:], dtype=src.dtype)
    return out.index_add_(0, seg, src)
def _pad(x, pw):
    flat = tuple(v for pair in reversed(pw) for v in pair)
    return torch.nn.functional.pad(x, flat)

kernel_name = 'concat_heads__mha_block_cached__gqa_block_cached__near_ridge'

def setup_inputs():

    _w = (lambda a: (lambda t: t.to(torch.bfloat16) if t.is_floating_point() else t)(torch.as_tensor(a)))
    def _A_setup():
        B, Sq, D = 8, 96, 448
        H, Sk, Dh = 16, 512, 256
        return {
            "x": _w((lambda *s: torch.randn(*s, dtype=torch.bfloat16) * 0.8)(B, Sq, D)),
            "k_cache": _w((lambda *s: torch.randn(*s, dtype=torch.bfloat16) * 0.8)(B, H, Sk, Dh)),
            "v_cache": _w((lambda *s: torch.randn(*s, dtype=torch.bfloat16) * 0.05)(B, H, Sk, Dh)),
            "wq": _w((lambda *s: torch.randn(*s, dtype=torch.bfloat16) * 0.8)(D, H * Dh) * (D ** -0.5)),
            "wo": _w((lambda *s: torch.randn(*s, dtype=torch.bfloat16) * 0.05)(H * Dh, D) * ((H * Dh) ** -0.5)),
        }
    _A_in = _A_setup()

    def _B_setup():
        B, Sq, D = 8, 96, 448
        Hq, Hkv, Sk, Dh = 16, 16, 512, 256
        assert Hq % Hkv == 0, (Hq, Hkv)
        return {
            "x": _w((lambda *s: torch.randn(*s, dtype=torch.bfloat16) * 0.8)(B, Sq, D)),
            "k_cache": _w((lambda *s: torch.randn(*s, dtype=torch.bfloat16) * 0.8)(B, Hkv, Sk, Dh)),
            "v_cache": _w((lambda *s: torch.randn(*s, dtype=torch.bfloat16) * 0.05)(B, Hkv, Sk, Dh)),
            "wq": _w((lambda *s: torch.randn(*s, dtype=torch.bfloat16) * 0.8)(D, Hq * Dh) * (D ** -0.5)),
            "wo": _w((lambda *s: torch.randn(*s, dtype=torch.bfloat16) * 0.05)(Hq * Dh, D) * ((Hq * Dh) ** -0.5)),
        }
    _B_in = _B_setup()

    return {
        "A_x": _A_in["x"],
        "A_k_cache": _A_in["k_cache"],
        "A_v_cache": _A_in["v_cache"],
        "A_wq": _A_in["wq"],
        "A_wo": _A_in["wo"],
        "B_x": _B_in["x"],
        "B_k_cache": _B_in["k_cache"],
        "B_v_cache": _B_in["v_cache"],
        "B_wq": _B_in["wq"],
        "B_wo": _B_in["wo"],
    }

def reference(A_x, A_k_cache, A_v_cache, A_wq, A_wo, B_x, B_k_cache, B_v_cache, B_wq, B_wo):
    def _A_ref(x, k_cache, v_cache, wq, wo):
        B, Sq, D = x.shape
        H, Dh = 16, 256
        q = (lambda x, *d: x.permute(*d))((x @ wq).reshape(B, Sq, H, Dh), 0, 2, 1, 3)
        scores = torch.einsum("bhqd,bhkd->bhqk", q, k_cache) * (Dh ** -0.5)
        p = _softmax(scores, axis=-1)
        o = torch.einsum("bhqk,bhkd->bhqd", p, v_cache)
        return (lambda x, *d: x.permute(*d))(o, 0, 2, 1, 3).reshape(B, Sq, H * Dh) @ wo

    def _B_ref(x, k_cache, v_cache, wq, wo):
        B, Sq, D = x.shape
        Hq, Dh = 16, 256
        Hkv = k_cache.shape[1]
        rep = Hq // Hkv
        q = (lambda x, *d: x.permute(*d))((x @ wq).reshape(B, Sq, Hq, Dh), 0, 2, 1, 3)
        k = (lambda x, n, axis: torch.repeat_interleave(x, n, dim=axis))(k_cache, rep, axis=1)
        v = (lambda x, n, axis: torch.repeat_interleave(x, n, dim=axis))(v_cache, rep, axis=1)
        scores = torch.einsum("bhqd,bhkd->bhqk", q, k) * (Dh ** -0.5)
        p = _softmax(scores, axis=-1)
        o = torch.einsum("bhqk,bhkd->bhqd", p, v)
        return (lambda x, *d: x.permute(*d))(o, 0, 2, 1, 3).reshape(B, Sq, Hq * Dh) @ wo

    a = _A_ref(A_x, A_k_cache, A_v_cache, A_wq, A_wo)
    b = _B_ref(B_x, B_k_cache, B_v_cache, B_wq, B_wo)
    return torch.concatenate([a, b], axis=-1)
```

```python
def R(f, base, n=1):
    return [f"{f}{base+i}" for i in range(n)]
def F(f, base, n=1):
    return f"{f}{base}" if n == 1 else f"{f}[{base}:{base+n-1}]"

class Prog:
    def __init__(self):
        self.ins = []
        self.ds_q = []
        self.tail_blocks = []
        self.nlabel = 0
        self.cap = 14
    def label(self, p="L"):
        self.nlabel += 1
        return f"{p}_{self.nlabel}"
    def raw(self, text, kind="other", w=(), r=(), **kw):
        d = dict(text=text, kind=kind, w=set(w), r=set(r))
        d.update(kw)
        self.ins.append(d)
    def lab(self, name):
        self.raw(name + ":", kind="label")
    def comment(self, t):
        self.raw("; " + t, kind="label")
    def _need(self, regs):
        regs = set(regs)
        last = -1
        for i, q in enumerate(self.ds_q):
            if q & regs:
                last = i
        if last >= 0:
            rem = len(self.ds_q) - 1 - last
            self.raw(f"s_waitcnt lgkmcnt({min(rem,15)})", kind="wait")
            self.ds_q = self.ds_q[len(self.ds_q) - min(rem, 15):] if rem > 0 else []
    def lgkm0(self):
        self.raw("s_waitcnt lgkmcnt(0)", kind="wait")
        self.ds_q = []
    def op(self, text, kind, w=(), r=(), **kw):
        self._need(set(w) | set(r))
        self.raw(text, kind, w, r, **kw)
    def valu(self, text, w, r=()):
        self.op(text, "valu", w, r)
    def trans(self, text, w, r=()):
        self.op(text, "trans", w, r)
    def salu(self, text, w=(), r=()):
        self.raw(text, "salu", w, r)
    def ds(self, text, w=(), r=()):
        self._need(set(r))
        if len(self.ds_q) >= self.cap:
            self.raw(f"s_waitcnt lgkmcnt({self.cap-1})", kind="wait", capw=True)
            self.ds_q = self.ds_q[-(self.cap-1):]
        self.raw(text, "ds", w, r)
        self.ds_q.append(set(w))
    def vmem(self, text, w=(), r=(), wide_store=(), dma=False):
        self.op(text, "vmem", w, r, wide=set(wide_store), dma=dma)
    def mfma(self, d, a, b, c):
        dr = R(d[0], d[1], 16); ar = R(a[0], a[1], 4); br = R(b[0], b[1], 4)
        ctext = "0" if c is None else F(c[0], c[1], 16)
        cr = [] if c is None else R(c[0], c[1], 16)
        self.op(f"v_mfma_f32_32x32x16_bf16 {F(d[0],d[1],16)}, {F(a[0],a[1],4)}, {F(b[0],b[1],4)}, {ctext}",
                "mfma", dr, ar + br + cr, ab=set(ar + br), c=set(cr), dkey=d, ckey=c)
    def need_states(self, prev, cur):
        pk, ck = prev["kind"], cur["kind"]
        n = 0
        pv = pk in ("valu", "trans")
        cv = ck in ("valu", "trans")
        if pv and ck == "mfma" and (prev["w"] & cur["r"]):
            n = max(n, 2)
        if pk == "mfma":
            D = prev["w"]
            if cv and (D & (cur["r"] | cur["w"])): n = max(n, 12)
            if ck in ("vmem", "ds") and (D & (cur["r"] | cur["w"])): n = max(n, 12)
            if ck == "mfma":
                if D & cur["ab"]: n = max(n, 12)
                if (D & cur["c"]) and cur["ckey"] != prev["dkey"]: n = max(n, 10)
                if (D & cur["w"]) and cur["ckey"] != prev["dkey"]: n = max(n, 12)
            if cv and (prev["c"] & cur["w"]): n = max(n, 7)
        if pk == "trans" and cv and (prev["w"] & cur["r"]): n = max(n, 1)
        if pv and cv and (prev["w"] & cur["r"]):
            t = cur["text"]
            if t.startswith("v_readfirstlane") or t.startswith("v_readlane"): n = max(n, 1)
            if t.startswith("v_permlane"): n = max(n, 2)
            if any(x[0] == "s" or x == "vcc" for x in (prev["w"] & cur["r"])): n = max(n, 2)
        if pv and ck == "vmem" and any(x[0] == "s" for x in (prev["w"] & cur["r"])): n = max(n, 5)
        if pk == "salu" and "m0" in prev["w"] and ck == "vmem" and cur.get("dma"): n = max(n, 1)
        if pk == "vmem" and prev.get("wide") and (prev["wide"] & cur["w"]): n = max(n, 2)
        return n
    def finalize(self):
        out = []
        for cur in self.ins:
            if cur["kind"] != "label":
                dist = 0; need = 0
                for prev in reversed(out):
                    if prev["kind"] == "label":
                        continue
                    n = self.need_states(prev, cur)
                    if n - dist > need: need = n - dist
                    dist += prev.get("states", 1)
                    if dist >= 13: break
                while need > 0:
                    k = min(need, 8)
                    out.append(dict(text=f"s_nop {k-1}", kind="nop", w=set(), r=set(), states=k))
                    need -= k
            out.append(cur)
        self.ins = out
    def text(self):
        L = []
        for i in self.ins:
            L.append(i["text"] if i["kind"] == "label" else "  " + i["text"])
        return "\n".join(L)
    def stats(self):
        from collections import Counter
        return Counter(i["kind"] for i in self.ins)
```

```python
import sys, math, struct
from asmlib import Prog, R, F
NAME = "concat_heads__mha_block_cached__gqa_block_cached__near_ridge"
SLOT = 16384
XB = [8 * SLOT, 9 * SLOT]
FLAG = 9 * SLOT + 12288
PART = 86016
NQ, NK, NV, NO = 14, 16, 16, 14
IQ, IK, IV, IO = 0, 14, 30, 46
NITEM = 60

def f32bits(x):
    return struct.unpack("<I", struct.pack("<f", x))[0]

class Cfg:
    PD = 6
    D_kv = 56
    D_w = 32
    kfirst = 4
    o_early = 2
    o_early_at = 10
    stamps = False
    touch = True
    wpol = " nt"
    xpol = ""
    opol = ""
    tpol = " nt"
    otouch_at = 4
    slowstep = 8
    order = None
    nosync = False
    nocheck = False
    nomax = False
    nopops = False
    noepi = False
    nostore = False
    s1at = 'first'
    pk = False
    cyc = False
    noload = False
    nocomp = False
    def __init__(self, **kw):
        for k, v in kw.items():
            assert hasattr(Cfg, k), k
            setattr(self, k, v)

sX, sK, sV, sWq, sWo, sWs, sOut, sDbg = 4, 6, 8, 10, 12, 14, 16, 18
SRD_K, SRD_V, SRD_W, SRD_X, SRD_O, SRD_P, SRD_G, SRD_OUT = 24, 28, 32, 36, 40, 44, 48, 52
sB, sWhich, sH, sGrp, sWave = 56, 57, 58, 59, 60
sFlag, sPub, sOff, sRot, sOffW, sOffX, sC, sNC, sT0 = 61, 62, 63, 64, 65, 66, 67, 68, 69
sStamp = 70
sT1, sT2, sT3 = 86, 87, 88
sNeed, sCnt, sRet = 89, 93, 94

def srd(n): return f"s[{n}:{n+3}]"

def issue_order(cfg):
    if cfg.order: return list(cfg.order)
    o = [IK + i for i in range(cfg.kfirst)] + [IQ + i for i in range(NQ)] + [IK + i for i in range(cfg.kfirst, NK)]
    o += [IV + i for i in range(cfg.o_early_at)] + [IO + i for i in range(cfg.o_early)]
    o += [IV + i for i in range(cfg.o_early_at, NV)] + [IO + i for i in range(cfg.o_early, NO)]
    assert sorted(o) == list(range(NITEM))
    return o

def alloc_slots(order):
    prev = {s: -1 for s in range(8)}
    slot, need = {}, {}
    issued = set()
    for it in order:
        s = min(prev, key=lambda k: (prev[k], k))
        p = prev[s]
        slot[it] = s
        prev[s] = it
        if it < NQ and it % 2 == 0:
            p = max(p, it - 4)
        need[it] = p
        assert all(j in issued for j in range(p + 1)), (it, p)
        issued.add(it)
        if it == 12:
            prev[8] = 12
    return slot, need

def stamp(P, cfg, i):
    if cfg.stamps:
        P.raw(f"{'s_memtime' if cfg.cyc else 's_memrealtime'} s[{sStamp+2*i}:{sStamp+2*i+1}]", "salu")

def prologue(P, cfg):
    S = P.salu
    S("s_cmp_ge_u32 s2, 256"); S("s_cbranch_scc1 L_end")
    stamp(P, cfg, 0)
    S(f"s_bfe_u32 s{sWhich}, s2, 0x10002")
    S(f"s_mul_i32 s3, s{sWhich}, 40")
    S("s_add_u32 s20, s0, s3"); S("s_addc_u32 s21, s1, 0")
    S(f"s_load_dwordx8 s[4:11], s[20:21], 0")
    S(f"s_load_dwordx2 s[12:13], s[20:21], 32")
    S(f"s_load_dwordx2 s[14:15], s[0:1], 96")
    S(f"s_load_dwordx4 s[16:19], s[0:1], 80")
    P.valu("v_lshrrev_b32 v3, 6, v0", ["v3"], ["v0"])
    S(f"s_bfe_u32 s{sB}, s2, 0x30003")
    S(f"s_and_b32 s{sH}, s2, 3"); S(f"s_lshl_b32 s{sH}, s{sH}, 2")
    S(f"s_lshr_b32 s3, s2, 6"); S(f"s_add_u32 s{sH}, s{sH}, s3")
    P.valu(f"v_readfirstlane_b32 s{sWave}, v3", [f"s{sWave}"], ["v3"])
    P.valu("v_and_b32 v0, 63, v0", ["v0"], ["v0"])
    S(f"s_lshl_b32 s{sGrp}, s{sWhich}, 3"); S(f"s_add_u32 s{sGrp}, s{sGrp}, s{sB}")
    S(f"s_cmp_eq_u32 s{sB}, 7"); S(f"s_cselect_b32 s{sRot}, 0, s{sB}")
    P.valu("v_lshlrev_b32 v2, 4, v0", ["v2"], ["v0"])
    P.valu(f"v_add_u32 v2, {FLAG}, v2", ["v2"], ["v2"])
    S(f"s_lshl_b32 s3, s{sWave}, 2")
    P.valu(f"v_add_u32 v1, s3, v2", ["v1"], ["v2"])
    P.valu(f"v_mov_b32 v2, {FLAG}", ["v2"])
    P.valu("v_mov_b32 v4, 0", ["v4"])
    P.ds("ds_write_b32 v1, v4", [], ["v1", "v4"])
    S(f"s_lshl_b32 s3, s{sB}, 4"); S(f"s_add_u32 s3, s3, s{sH}"); S(f"s_lshl_b32 s{sT0}, s3, 18")
    S(f"s_cmp_eq_u32 s{sWave}, 3"); S("s_cbranch_scc1 L_loader")

def mk_srd(P, dst, base, off, size):
    S = P.salu
    if off is None:
        S(f"s_mov_b32 s{dst}, s{base}"); S(f"s_mov_b32 s{dst+1}, s{base+1}")
    else:
        S(f"s_add_u32 s{dst}, s{base}, {off}"); S(f"s_addc_u32 s{dst+1}, s{base+1}, 0")
    S(f"s_mov_b32 s{dst+2}, {size}"); S(f"s_mov_b32 s{dst+3}, 0x20000")

def srd_w(P):
    P.salu(f"s_lshl_b32 s3, s{sH}, 9"); mk_srd(P, SRD_W, sWq, "s3", 447 * 8192 + 512)
def srd_x(P):
    P.salu(f"s_mul_i32 s3, s{sB}, 86016"); mk_srd(P, SRD_X, sX, "s3", 86016)
def srd_o(P):
    P.salu(f"s_mul_i32 s3, s{sH}, {256*896}"); mk_srd(P, SRD_O, sWo, "s3", 256 * 896)

def loader(P, cfg, order, slot, need, endidx):
    S, V = P.salu, P.valu
    P.lab("L_loader")
    P.ds_q = []
    V("v_lshrrev_b32 v5, 5, v0", ["v5"], ["v0"])
    V("v_and_b32 v6, 31, v0", ["v6"], ["v0"])
    V("v_lshlrev_b32 v7, 9, v5", ["v7"], ["v5"])
    for t in range(8):
        V(f"v_add_u32 v3, {2*t}, v5", ["v3"], ["v5"])
        V(f"v_xor_b32 v3, v3, v6", ["v3"], ["v3", "v6"])
        V(f"v_lshl_add_u32 v{8+t}, v3, 4, v7", [f"v{8+t}"], ["v3", "v7"])
    P.raw("s_waitcnt lgkmcnt(0)", "wait")
    mk_srd(P, SRD_K, sK, f"s{sT0}", 262144)
    st = dict(c=0, done=0, pub=0, barrier=False, pre=False)
    ends = []
    def crossed(done):
        e = [e for it, e in ends if e <= done]
        return max(e) if e else 0
    def publish(n):
        V(f"v_mov_b32 v4, {n}", ["v4"])
        P.ds("ds_max_i32 v1, v4", [], ["v1", "v4"])
    def need_barrier():
        if not st["barrier"]:
            P.lgkm0(); P.raw("s_barrier", "salu"); st["barrier"] = True
    def pollread(Q):
        Q.ds("ds_read_b96 v[32:34], v2", ["v32", "v33", "v34"], ["v2"])
    def polluse(Q):
        Q.valu("v_min3_u32 v32, v32, v33, v34", ["v32"], ["v32", "v33", "v34"])
        Q.valu(f"v_readfirstlane_b32 s{sFlag}, v32", [f"s{sFlag}"], ["v32"])
    Q = Prog(); Q.lab("L_slow")
    def qpoll():
        pollread(Q); polluse(Q)
        Q.salu(f"s_cmp_gt_u32 s{sFlag}, s{sNeed}"); Q.salu("s_cbranch_scc1 L_slowret")
    qpoll()
    for n in range(56 - cfg.slowstep, -1, -cfg.slowstep):
        Q.raw(f"s_waitcnt vmcnt({n})", "wait")
        Q.salu(f"s_sub_u32 s3, s{sCnt}, {n}")
        Q.valu("v_mov_b32 v4, s3", ["v4"]); Q.ds("ds_max_i32 v1, v4", [], ["v1", "v4"])
        if n == 0: Q.lab("L_slowx")
        qpoll()
    Q.salu("s_branch L_slowx")
    Q.lab("L_slowret")
    Q.salu(f"s_setpc_b64 s[{sRet}:{sRet+1}]")
    P.tail_blocks.append(Q)
    def late_setup():
        mk_srd(P, SRD_V, sV, f"s{sT0}", 262144)
        srd_w(P); srd_x(P); srd_o(P)
        for p in range(2):
            V(f"v_add_u32 v3, {2*p}, v5", ["v3"], ["v5"])
            V("v_lshlrev_b32 v3, 2, v3", ["v3"], ["v3"])
            V("v_xor_b32 v3, v3, v6", ["v3"], ["v3", "v6"])
            V(f"v_lshl_add_u32 v{16+p}, v3, 4, v7", [f"v{16+p}"], ["v3", "v7"])
            V("v_lshlrev_b32 v18, 13, v5", ["v18"], ["v5"])
            V(f"v_lshl_add_u32 v3, v3, 4, v18", ["v3"], ["v3", "v18"])
            V(f"v_add_u32 v{20+p}, {p*15360}, v3", [f"v{20+p}"], ["v3"])
            V(f"v_add_u32 v{22+p}, {(p+2)*15360}, v3", [f"v{22+p}"], ["v3"])
        V("v_lshrrev_b32 v18, 3, v0", ["v18"], ["v0"])
        V("v_mul_u32_u24 v18, 896, v18", ["v18"], ["v18"])
        V("v_and_b32 v19, 7, v0", ["v19"], ["v0"])
        V("v_lshrrev_b32 v35, 4, v0", ["v35"], ["v0"])
        for p in range(2):
            V(f"v_add_u32 v3, {4*p}, v35", ["v3"], ["v35"])
            V("v_xor_b32 v3, v3, v19", ["v3"], ["v3", "v19"])
            V("v_lshl_add_u32 v3, v3, 4, v18", ["v3"], ["v3", "v18"])
            V(f"v_add_u32 v{24+p}, {p*6144}, v3", [f"v{24+p}"], ["v3"])
            V(f"v_add_u32 v{26+p}, {(p+2)*6144}, v3", [f"v{26+p}"], ["v3"])
        V("v_and_b32 v3, 1, v35", ["v3"], ["v35"])
        V("v_lshlrev_b32 v3, 2, v3", ["v3"], ["v3"])
        V("v_xor_b32 v3, v3, v19", ["v3"], ["v3", "v19"])
        V("v_lshl_add_u32 v28, v3, 4, v18", ["v28"], ["v3", "v18"])
        for j in range(1, 4):
            V(f"v_add_u32 v{28+j}, {j*6144}, v28", [f"v{28+j}"], ["v28"])
        S(f"s_mov_b32 s{sFlag}, 0")
        S(f"s_mov_b32 s{sT1}, s{sRot}")
        S(f"s_mov_b32 s{sT2}, s{sRot}")
    did_setup = False
    def group(lds, srdn, soff_setup, vregs, pol, D):
        S(f"s_mov_b32 m0, {lds}", ["m0"])
        soff_setup()
        for j, vr in enumerate(vregs):
            if not cfg.noload: P.vmem(f"buffer_load_dwordx4 v{vr}, {srd(srdn)}, s{sOff} offen offset:{j*1024}{pol} lds", [], [f"v{vr}"], dma=True)
            st["c"] += 1
    def after_group(D):
        if st["c"] - st["done"] > D:
            st["done"] = st["c"] - D
            P.raw(f"s_waitcnt vmcnt({D})", "wait")
            n = crossed(st["done"])
            if n > st["pub"]:
                need_barrier(); publish(st["done"]); st["pub"] = n
    def prefetch_flags(idx):
        if idx + 1 < len(order) and need[order[idx + 1]] >= 0:
            need_barrier(); pollread(P); st["pre"] = True
    for idx, it in enumerate(order):
        if not did_setup and (it < IK or it >= IV or idx >= 2):
            late_setup(); did_setup = True
        p = need[it]
        if cfg.nosync: p = -1
        if p >= 0:
            assert st["pre"]; st["pre"] = False
            polluse(P)
            S(f"s_cmp_gt_u32 s{sFlag}, {p}"); S(f"s_cbranch_scc1 L_lb{it}")
            S(f"s_mov_b32 s{sNeed}, {p}"); S(f"s_mov_b32 s{sCnt}, {st['c']}")
            S(f"s_call_b64 s[{sRet}:{sRet+1}], L_slow")
            P.lab(f"L_lb{it}")
            P.ds_q = []
        base = slot[it] * SLOT
        if it < IK:
            D = cfg.D_w
            if it % 2 == 0:
                S(f"s_lshl_b32 s{sOffW}, s{sT1}, 19"); S(f"s_lshl_b32 s{sOffX}, s{sT1}, 7")
                S(f"s_add_u32 s{sT1}, s{sT1}, 1"); S(f"s_cmp_eq_u32 s{sT1}, 7"); S(f"s_cselect_b32 s{sT1}, 0, s{sT1}")
                for g in range(3):
                    group(XB[(it // 2) & 1] + g * 4096, SRD_X, lambda: S(f"s_add_u32 s{sOff}, s{sOffX}, {g*28672}"), [24, 25, 26, 27], cfg.xpol, D)
                    after_group(D)
            for g in range(4):
                if g == 3: prefetch_flags(idx)
                group(base + g * 4096, SRD_W, lambda: S(f"s_add_u32 s{sOff}, s{sOffW}, {(it&1)*262144 + g*65536}"), [20, 21, 22, 23], cfg.wpol, D)
                if g == 3: ends.append((it, st["c"]))
                after_group(D)
        elif it < IV:
            D = cfg.D_kv; t = it - IK
            for g in range(4):
                if g == 3: prefetch_flags(idx)
                group(base + g * 4096, SRD_K, lambda: S(f"s_mov_b32 s{sOff}, {t*16384 + g*4096}"), [8 + 4 * (g & 1) + j for j in range(4)], " nt", D)
                if g == 3: ends.append((it, st["c"]))
                after_group(D)
        elif it < IO:
            D = cfg.D_kv; t = it - IV
            for g in range(4):
                if g == 3: prefetch_flags(idx)
                group(base + g * 4096, SRD_V, lambda: S(f"s_mov_b32 s{sOff}, {t*16384 + g*4096}"), [16, 17, 16, 17], " nt", D)
                if g == 3: ends.append((it, st["c"]))
                after_group(D)
        else:
            t = it - IO
            D = cfg.D_w if all(x >= IO for x in order[idx:]) else cfg.D_kv
            if t % 2 == 0:
                S(f"s_lshl_b32 s{sOffX}, s{sT2}, 7")
                S(f"s_add_u32 s{sT2}, s{sT2}, 1"); S(f"s_cmp_eq_u32 s{sT2}, 7"); S(f"s_cselect_b32 s{sT2}, 0, s{sT2}")
            for g in range(4):
                if g == 3: prefetch_flags(idx)
                group(base + g * 4096, SRD_O, lambda: S(f"s_add_u32 s{sOff}, s{sOffX}, {(128*(t&1) + 32*g)*896}"), [28, 29, 30, 31], cfg.opol, D)
                if g == 3: ends.append((it, st["c"]))
                after_group(D)
        if it == IQ + NQ - 1: stamp(P, cfg, 1)
        if it == IK + NK - 1: stamp(P, cfg, 2)
        if it == IV + NV - 1: stamp(P, cfg, 3)
    stamp(P, cfg, 4)
    for it, e in ends:
        if e > st["pub"]:
            if e > st["done"]:
                st["done"] = e
                P.raw(f"s_waitcnt vmcnt({st['c']-e})", "wait")
            publish(st["done"]); st["pub"] = e
    assert st["pub"] == st["c"]
    assert dict(ends) == endidx
    stamp(P, cfg, 5)

class AddrReg:
    def __init__(self, reg): self.reg = reg; self.base = 0
def consumer(P, cfg, slot, endidx):
    S, V = P.salu, P.valu
    P.raw("s_waitcnt lgkmcnt(0)", "wait"); P.ds_q = []
    srd_w(P); srd_x(P); srd_o(P)
    if cfg.touch:
        S(f"s_cmp_eq_u32 s{sWave}, 1"); S("s_cbranch_scc1 L_t1")
        S(f"s_cmp_eq_u32 s{sWave}, 2"); S("s_cbranch_scc1 L_t2")
        V("v_lshrrev_b32 v6, 2, v0", ["v6"], ["v0"]); V("v_lshlrev_b32 v6, 13, v6", ["v6"], ["v6"])
        V("v_and_b32 v7, 3, v0", ["v7"], ["v0"]); V("v_lshl_add_u32 v6, v7, 7, v6", ["v6"], ["v6", "v7"])
        S(f"s_mul_i32 s{sOff}, s{sB}, {56*8192}")
        for i in range(4):
            P.vmem(f"buffer_load_dword a{i}, v6, {srd(SRD_W)}, s{sOff} offen{cfg.tpol}", [f"a{i}"], ["v6"])
            S(f"s_add_u32 s{sOff}, s{sOff}, {16*8192}")
        S("s_branch L_t2")
        P.lab("L_t1")
        V("v_lshlrev_b32 v6, 7, v0", ["v6"], ["v0"])
        S(f"s_and_b32 s{sOff}, s{sH}, 3"); S(f"s_mul_i32 s{sOff}, s{sOff}, {168*128}")
        for i in range(3):
            P.vmem(f"buffer_load_dword a{i}, v6, {srd(SRD_X)}, s{sOff} offen{cfg.tpol}", [f"a{i}"], ["v6"])
            S(f"s_add_u32 s{sOff}, s{sOff}, 8192")
        P.lab("L_t2")
    V("v_and_b32 v36, 31, v0", ["v36"], ["v0"])
    V("v_lshrrev_b32 v37, 5, v0", ["v37"], ["v0"])
    V("v_bfe_u32 v38, v0, 4, 1", ["v38"], ["v0"])
    V("v_bfe_u32 v39, v0, 2, 2", ["v39"], ["v0"])
    V("v_and_b32 v40, 3, v0", ["v40"], ["v0"])
    V("v_bfe_u32 v41, v0, 1, 1", ["v41"], ["v0"])
    V("v_and_b32 v42, 1, v0", ["v42"], ["v0"])
    V("v_lshl_add_u32 v41, v42, 1, v41", ["v41"], ["v41", "v42"])
    V("v_and_b32 v42, 15, v36", ["v42"], ["v36"])
    V("v_lshlrev_b32 v43, 9, v36", ["v43"], ["v36"])
    for s7 in range(8):
        V(f"v_add_u32 v44, {2*s7}, v37", ["v44"], ["v37"])
        V("v_xor_b32 v44, v44, v42", ["v44"], ["v44", "v42"])
        V(f"v_lshl_add_u32 v{8+s7}, v44, 4, v43", [f"v{8+s7}"], ["v44", "v43"])
    V("v_lshl_add_u32 v42, v37, 2, v39", ["v42"], ["v37", "v39"])
    V("v_lshlrev_b32 v43, 9, v42", ["v43"], ["v42"])
    V("v_lshl_add_u32 v43, v38, 5, v43", ["v43"], ["v38", "v43"])
    V("v_lshl_add_u32 v43, v40, 3, v43", ["v43"], ["v40", "v43"])
    V("v_lshl_add_u32 v45, v37, 3, v39", ["v45"], ["v37", "v39"])
    V("v_lshlrev_b32 v45, 9, v45", ["v45"], ["v45"])
    V("v_lshl_add_u32 v45, v38, 5, v45", ["v45"], ["v38", "v45"])
    V("v_lshl_add_u32 v45, v41, 3, v45", ["v45"], ["v41", "v45"])
    for d3 in range(4):
        V(f"v_xor_b32 v44, {d3}, v39", ["v44"], ["v39"])
        V(f"v_lshl_add_u32 v{16+d3}, v44, 6, v43", [f"v{16+d3}"], ["v44", "v43"])
        V(f"v_lshl_add_u32 v{20+d3}, v44, 6, v45", [f"v{20+d3}"], ["v44", "v45"])
    V("v_lshlrev_b32 v43, 7, v42", ["v43"], ["v42"])
    V("v_lshl_add_u32 v43, v38, 5, v43", ["v43"], ["v38", "v43"])
    V("v_lshl_add_u32 v43, v41, 3, v43", ["v43"], ["v41", "v43"])
    V("v_lshrrev_b32 v44, 1, v39", ["v44"], ["v39"])
    V("v_lshl_add_u32 v28, v44, 6, v43", ["v28"], ["v44", "v43"])
    V("v_xor_b32 v29, 64, v28", ["v29"], ["v28"])
    S(f"s_lshl_b32 s3, s{sWave}, 12")
    V("v_lshlrev_b32 v43, 7, v36", ["v43"], ["v36"])
    V("v_add_u32 v43, s3, v43", ["v43"], ["v43"])
    V("v_bfe_u32 v42, v36, 1, 3", ["v42"], ["v36"])
    for s in range(4):
        V(f"v_add_u32 v44, {2*s}, v37", ["v44"], ["v37"])
        V("v_xor_b32 v44, v44, v42", ["v44"], ["v44", "v42"])
        V(f"v_lshl_add_u32 v{24+s}, v44, 4, v43", [f"v{24+s}"], ["v44", "v43"])
    V("v_lshrrev_b32 v42, 3, v36", ["v42"], ["v36"])
    V("v_lshlrev_b32 v5, 10, v42", ["v5"], ["v42"])
    V("v_lshl_add_u32 v5, v37, 7, v5", ["v5"], ["v37", "v5"])
    V("v_and_b32 v42, 7, v36", ["v42"], ["v36"])
    V("v_lshl_add_u32 v5, v42, 4, v5", ["v5"], ["v42", "v5"])
    V("v_mov_b32 v30, 0", ["v30"]); V("v_mov_b32 v31, 0", ["v31"])
    c = math.log2(math.e) / 16.0
    S(f"s_mov_b32 s{sC}, {hex(f32bits(c))}"); S(f"s_mov_b32 s{sNC}, {hex(f32bits(-c))}")
    S(f"s_lshl_b32 s3, s{sGrp}, 4"); S(f"s_add_u32 s3, s3, s{sH}"); S(f"s_mul_i32 s3, s3, {PART}")
    mk_srd(P, SRD_P, sWs, "s3", PART)
    S(f"s_mul_i32 s{sOffW}, s{sWave}, 28672")
    P.raw("s_barrier", "salu")

    regs = {r: AddrReg(r) for r in range(8, 30)}
    def addr(reg, off):
        a = regs[reg]
        if not (0 <= off - a.base <= 65535 - 16):
            nb = (off // 65536) * 65536
            d = nb - a.base
            if d > 0: V(f"v_add_u32 v{reg}, {d}, v{reg}", [f"v{reg}"], [f"v{reg}"])
            else: V(f"v_subrev_u32 v{reg}, {-d}, v{reg}", [f"v{reg}"], [f"v{reg}"])
            a.base = nb
        return off - a.base
    def rd128(dst, reg, off):
        o = addr(reg, off)
        P.ds(f"ds_read_b128 {F(dst[0], dst[1], 4)}, v{reg} offset:{o}", R(dst[0], dst[1], 4), [f"v{reg}"])
    def rdtr(dstbase, reg, off):
        o = addr(reg, off)
        P.ds(f"ds_read_b64_tr_b16 {F('v', dstbase, 2)}, v{reg} offset:{o}", R("v", dstbase, 2), [f"v{reg}"])

    M = []
    for it in range(NQ):
        sb = slot[it] * SLOT
        seq = [(ks, dt) for ks in range(2) for dt in range(8)] if it < NQ - 1 else [(ks, dt) for dt in range(8) for ks in range(2)]
        for ks, dt in seq:
            def rd(rb, sb=sb, ks=ks, dt=dt):
                for pp in range(2): rdtr(rb + 2 * pp, 20 + (dt & 3), sb + ks * 8192 + pp * 2048 + 256 * (dt >> 2))
            xb = 224 + 16 * ((it // 2) & 1) + 4 * (2 * (it & 1) + ks)
            d = ("v", 128 + 16 * dt)
            M.append(dict(item=it, rd=rd, d=d, b=("a", xb), c=None if (it == 0 and ks == 0) else d))
    for t in range(NK):
        sb = slot[IK + t] * SLOT
        for s in range(16):
            def rd(rb, sb=sb, s=s): rd128(("v", rb), 8 + (s & 7), sb + 256 * (s >> 3))
            d = ("a", 16 * t)
            M.append(dict(item=IK + t, rd=rd, d=d, b=("v", 64 + 4 * s), c=None if s == 0 else d))
    for t in range(NV):
        sb = slot[IV + t] * SLOT
        seq = [(ks, dt) for ks in range(2) for dt in range(8)] if t < NV - 1 else [(ks, dt) for dt in range(8) for ks in range(2)]
        for ks, dt in seq:
            def rd(rb, sb=sb, ks=ks, dt=dt):
                for pp in range(2): rdtr(rb + 2 * pp, 16 + (dt & 3), sb + ks * 8192 + pp * 4096 + 256 * (dt >> 2))
            d = ("v", 128 + 16 * dt)
            M.append(dict(item=IV + t, rd=rd, d=d, b=("v", 112 + 8 * (t & 1) + 4 * ks), c=None if (t == 0 and ks == 0) else d))
    for t in range(NO):
        sb = slot[IO + t] * SLOT
        stg, hh = t // 2, t & 1
        seq = [(kk, nt) for kk in range(8) for nt in range(2)] if t < NO - 1 else [(kk, nt) for nt in range(2) for kk in range(8)]
        for kk, nt in seq:
            def rd(rb, sb=sb, kk=kk, nt=nt):
                for pp in range(2): rdtr(rb + 2 * pp, 28 + nt, sb + kk * 2048 + pp * 1024)
            d = ("v", 128 + 32 * (stg & 1) + 16 * nt)
            M.append(dict(item=IO + t, rd=rd, d=d, b=("v", 64 + 4 * (8 * hh + kk)), c=None if (hh == 0 and kk == 0) else d))
    N = len(M)
    first = {}
    for i, m in enumerate(M): first.setdefault(m["item"], i)
    fill = {i: [] for i in range(-1, N + 1)}
    pre = {i: [] for i in range(N)}
    def spread(ops, g0, g1):
        n = g1 - g0 + 1
        for j, op in enumerate(ops):
            fill[g0 + (j * n) // len(ops)].append(op)
    def cvt(dst, a):
        return lambda: V(f"v_cvt_pk_bf16_f32 v{dst}, v{a}, v{a+1}", [f"v{dst}"], [f"v{a}", f"v{a+1}"])
    def accrd(dst, a):
        return lambda: V(f"v_accvgpr_read_b32 v{dst}, a{a}", [f"v{dst}"], [f"a{a}"])
    f13 = first[NQ - 1]
    for dt in range(8):
        spread([cvt(64 + 8 * dt + j, 128 + 16 * dt + 2 * j) for j in range(8)], f13 + 2 * dt + 4, f13 + 2 * dt + 5)
    def maxops(t):
        ops = []
        for j in range(8):
            ops.append(accrd(128 + 2 * j, 16 * t + 2 * j)); ops.append(accrd(129 + 2 * j, 16 * t + 2 * j + 1))
            if t == 0 and j == 0:
                ops.append(lambda: V("v_max_f32 v6, v128, v129", ["v6"], ["v128", "v129"]))
            else:
                ops.append(lambda j=j: V(f"v_max3_f32 v6, v6, v{128+2*j}, v{129+2*j}", ["v6"], ["v6", f"v{128+2*j}", f"v{129+2*j}"]))
        return ops
    for t in range(NK - 1):
        f = first[IK + t + 1]
        if not cfg.nomax: spread(maxops(t), f + 3, f + 14)
    def pops(t):
        ops = []
        pb = 112 + 8 * (t & 1)
        for h in range(2):
            e = range(8 * h, 8 * h + 8)
            for j in e: ops.append(accrd(96 + j, 16 * t + j))
            for j in e: ops.append(lambda j=j: V(f"v_fma_f32 v{96+j}, v{96+j}, s{sC}, v6", [f"v{96+j}"], [f"v{96+j}", "v6"]))
            for j in e: ops.append(lambda j=j: P.trans(f"v_exp_f32 v{96+j}, v{96+j}", [f"v{96+j}"], [f"v{96+j}"]))
            for j in range(4 * h, 4 * h + 4):
                ops.append(cvt(pb + j, 96 + 2 * j))
                if cfg.pk:
                    ops.append(lambda j=j: V(f"v_pk_add_f32 v[30:31], v[30:31], v[{96+2*j}:{97+2*j}]", ["v30", "v31"], ["v30", "v31", f"v{96+2*j}", f"v{97+2*j}"]))
                else:
                    ops.append(lambda j=j: V(f"v_add_f32 v30, v30, v{96+2*j}", ["v30"], ["v30", f"v{96+2*j}"]))
                    ops.append(lambda j=j: V(f"v_add_f32 v31, v31, v{97+2*j}", ["v31"], ["v31", f"v{97+2*j}"]))
        return ops
    fv0 = first[IV]
    bub = maxops(NK - 1)
    bub.append(lambda: V("v_mov_b32 v3, v6", ["v3"], ["v6"]))
    bub.append(lambda: V("v_permlane32_swap_b32 v3, v6", ["v3", "v6"], ["v3", "v6"]))
    bub.append(lambda: V("v_max_f32 v6, v3, v6", ["v6"], ["v3", "v6"]))
    bub.append(lambda: V(f"v_mul_f32 v6, s{sNC}, v6", ["v6"], ["v6"]))
    p0 = pops(0)
    pre[fv0] += bub + p0[:len(p0) // 2]
    pre[fv0].append(lambda: stamp(P, cfg, 3))
    for t in range(NV - 1):
        f = first[IV + t]
        if t == 0:
            spread(p0[len(p0) // 2:], f, f + 5)
            spread(pops(1), f + 6, f + 15)
        elif not cfg.nopops:
            spread(pops(t + 1), f, f + 14)
    f15 = first[IV + NV - 1]
    fin = [lambda: V("v_add_f32 v30, v30, v31", ["v30"], ["v30", "v31"]),
           lambda: V("v_mov_b32 v31, v30", ["v31"], ["v30"]),
           lambda: V("v_permlane32_swap_b32 v30, v31", ["v30", "v31"], ["v30", "v31"]),
           lambda: V("v_add_f32 v30, v30, v31", ["v30"], ["v30", "v31"]),
           lambda: P.trans("v_rcp_f32 v6, v30", ["v6"], ["v30"]),
           lambda: V("v_mov_b32 v7, v6", ["v7"], ["v6"])]
    spread(fin, f15, f15 + 3)
    for dt in range(8):
        spread([cvt(64 + 8 * dt + j, 128 + 16 * dt + 2 * j) for j in range(8)], f15 + 2 * dt + 4, f15 + 2 * dt + 5)
    if cfg.otouch_at >= 0:
        f = first[IV + cfg.otouch_at]
        def otouch():
            S(f"s_cmp_lg_u32 s{sWave}, 0"); S("s_cbranch_scc1 L_not")
            V("v_lshlrev_b32 v4, 7, v0", ["v4"], ["v0"])
            S(f"s_mul_i32 s{sOff}, s{sB}, {32*896}")
            for i in range(4):
                P.vmem(f"buffer_load_dword a{i}, v4, {srd(SRD_O)}, s{sOff} offen", [f"a{i}"], ["v4"])
                S(f"s_add_u32 s{sOff}, s{sOff}, 8192")
            P.lab("L_not")
        fill[f + 2].append(otouch)
    def epi(stg, nt):
        ab = 128 + 32 * (stg & 1) + 16 * nt
        db = 192 + 16 * (stg & 1) + 8 * nt
        ops = []
        for j in range(2):
            for x in range(4):
                a = ab + 8 * j + 2 * x
                if cfg.pk:
                    ops.append(lambda a=a: V(f"v_pk_mul_f32 v[{a}:{a+1}], v[{a}:{a+1}], v[6:7]", [f"v{a}", f"v{a+1}"], [f"v{a}", f"v{a+1}", "v6", "v7"]))
                else:
                    ops.append(lambda a=a: V(f"v_mul_f32 v{a}, v{a}, v6", [f"v{a}"], [f"v{a}", "v6"]))
                    ops.append(lambda a=a: V(f"v_mul_f32 v{a+1}, v{a+1}, v6", [f"v{a+1}"], [f"v{a+1}", "v6"]))
            for x in range(4):
                ops.append(cvt(db + 4 * j + x, ab + 8 * j + 2 * x))
            dd = db + 4 * j
            if not cfg.nostore: ops.append(lambda dd=dd, j=j: P.vmem(f"buffer_store_dwordx4 v[{dd}:{dd+3}], v5, {srd(SRD_P)}, s{sOff} offen offset:{(2*nt+j)*256} sc1",
                                                  [], R("v", dd, 4) + ["v5"], wide_store=R("v", dd, 4)))
        return ops
    def epi_off():
        S(f"s_lshl_b32 s{sOff}, s{sRot}, 12"); S(f"s_add_u32 s{sOff}, s{sOff}, s{sOffW}")
        S(f"s_add_u32 s{sRot}, s{sRot}, 1"); S(f"s_cmp_eq_u32 s{sRot}, 7"); S(f"s_cselect_b32 s{sRot}, 0, s{sRot}")
    for stg in range(6):
        f = first[IO + 2 * stg + 2]
        if not cfg.noepi: spread([epi_off] + epi(stg, 0) + epi(stg, 1), f + 3, f + (30 if stg < 5 else 24))
    fl = first[IO + NO - 1]
    spread([epi_off] + epi(6, 0), fl + 10, fl + 14)
    fill[N - 1] += epi(6, 1)
    pre[first[IK]].append(lambda: P.raw("s_waitcnt vmcnt(0)", "wait"))
    pre[first[IK]].append(lambda: stamp(P, cfg, 2))
    pre[first[IO]].append(lambda: stamp(P, cfg, 4))

    def check(it):
        back = f"L_cb{it}"; spin = f"L_cs{it}"
        V(f"v_readfirstlane_b32 s{sFlag}, v3", [f"s{sFlag}"], ["v3"])
        S(f"s_cmp_ge_u32 s{sFlag}, {0 if cfg.nosync else endidx[it]}"); S(f"s_cbranch_scc1 {back}")
        P.lab(spin)
        P.raw("ds_read_b32 v3, v2 offset:12", "skip", states=0)
        P.raw("s_waitcnt lgkmcnt(0)", "skip", states=0)
        P.raw(f"v_readfirstlane_b32 s{sFlag}, v3", "skip", states=0)
        P.raw(f"s_cmp_ge_u32 s{sFlag}, {endidx[it]}", "skip", states=0)
        P.raw(f"s_cbranch_scc0 {spin}", "skip", states=0)
        P.lab(back)
    def flagread():
        P.ds("ds_read_b32 v3, v2 offset:12", ["v3"], ["v2"])
    def release(it):
        V(f"v_mov_b32 v4, {it+1}", ["v4"])
        P.ds("ds_write_b32 v1, v4", [], ["v1", "v4"])
    xq = []
    def reads(j):
        m = M[j]; it = m["item"]
        if first[it] == j:
            if it > 0 and not cfg.nocheck: release(it - 1)
            if not cfg.nocheck: check(it)
            if it == 0 and cfg.s1at == 'first': stamp(P, cfg, 1)
            if it < NQ and it % 2 == 0:
                xb = XB[(it // 2) & 1]
                for s in range(4):
                    xq.append((("a", 224 + 16 * ((it // 2) & 1) + 4 * s), 24 + s, xb))
        if xq:
            rd128(*xq.pop(0))
        m["rd"](32 + 4 * (j % 8))
        if j + 3 < N and M[j + 3]["item"] != it and first[M[j + 3]["item"]] == j + 3 and not cfg.nocheck:
            flagread()
    flagread()
    for j in range(cfg.PD): reads(j)
    for i, m in enumerate(M):
        for op in pre[i]: op()
        P.mfma(m["d"], ("v", 32 + 4 * (i % 8)), m["b"], m["c"])
        if i + cfg.PD < N: reads(i + cfg.PD)
        for op in fill[i]: op()

def tail_setup(P, cfg):
    S, V = P.salu, P.valu
    S(f"s_mul_i32 s3, s{sGrp}, {PART*16}")
    mk_srd(P, SRD_G, sWs, "s3", PART * 16)
    mk_srd(P, SRD_OUT, sOut, None, 8 * 96 * 896 * 2)
    V("v_lshrrev_b32 v9, 5, v0", ["v9"], ["v0"])
    V(f"v_mul_u32_u24 v8, {PART}, v9", ["v8"], ["v9"])
    V("v_and_b32 v10, 31, v0", ["v10"], ["v0"])
    V("v_lshl_add_u32 v8, v10, 4, v8", ["v8"], ["v10", "v8"])
    V("v_and_b32 v10, 7, v0", ["v10"], ["v0"])
    V("v_mul_u32_u24 v11, 1792, v10", ["v11"], ["v10"])
    V("v_lshl_add_u32 v11, v9, 5, v11", ["v11"], ["v9", "v11"])
    V("v_bfe_u32 v16, v0, 3, 1", ["v16"], ["v0"])
    V("v_lshl_add_u32 v11, v16, 4, v11", ["v11"], ["v16", "v11"])
    V("v_bfe_u32 v17, v0, 4, 1", ["v17"], ["v0"])
    V("v_lshl_add_u32 v11, v17, 3, v11", ["v11"], ["v17", "v11"])
    V("v_and_b32 v18, 1, v0", ["v18"], ["v0"])
    V("v_lshlrev_b32 v18, 4, v18", ["v18"], ["v18"])
    V("v_mov_b32 v19, 0x3f80", ["v19"])
    V("v_lshlrev_b32 v18, v18, v19", ["v18"], ["v18", "v19"])
    V("v_xor_b32 v16, v16, v17", ["v16"], ["v16", "v17"])
    V("v_bfe_u32 v19, v0, 1, 2", ["v19"], ["v0"])
    V("v_lshl_add_u32 v19, v16, 2, v19", ["v19"], ["v16", "v19"])
    for x in range(4):
        V(f"v_cmp_eq_u32 vcc, {x}, v19", ["vcc"], ["v19"])
        V(f"v_cndmask_b32 v{12+x}, 0, v18, vcc", [f"v{12+x}"], ["v18", "vcc"])
    S(f"s_lshl_b32 s{sT0}, s{sH}, 2"); S(f"s_add_u32 s{sT0}, s{sT0}, s{sWave}")
    S(f"s_mul_i32 s{sT3}, s{sB}, {96*1792}"); S(f"s_mul_i32 s3, s{sWhich}, 896"); S(f"s_add_u32 s{sT3}, s{sT3}, s3")
    S(f"s_lshl_b32 s3, s{sGrp}, 4")
    V("v_mov_b32 v20, s3", ["v20"]); V("v_mov_b32 v21, 1", ["v21"])

def reduce_part(P, cfg):
    S, V = P.salu, P.valu
    def loads(k):
        S(f"s_lshl_b32 s{sOff}, s{sT0}, 9")
        if k: S(f"s_add_u32 s{sOff}, s{sOff}, {k*64*512}")
        for i in range(8):
            r = 64 + 32 * k + 4 * i
            P.vmem(f"buffer_load_dwordx4 v[{r}:{r+3}], v8, {srd(SRD_G)}, s{sOff} offen sc1", R("v", r, 4), ["v8"])
            if i < 7: S(f"s_add_u32 s{sOff}, s{sOff}, {2*PART}")
    def outoff(k, dst):
        S(f"s_add_u32 s3, s{sT0}, {64*k}")
        S(f"s_and_b32 s{dst}, s3, 1"); S(f"s_lshl_b32 s{dst}, s{dst}, 6")
        S(f"s_lshr_b32 s3, s3, 1")
        S(f"s_cmp_ge_u32 s3, 28"); S(f"s_cselect_b32 s{sT1}, 28, 0"); S(f"s_cselect_b32 s{sT2}, 32, 0")
        S(f"s_cmp_ge_u32 s3, 56"); S(f"s_cselect_b32 s{sT1}, 56, s{sT1}"); S(f"s_cselect_b32 s{sT2}, 64, s{sT2}")
        S(f"s_sub_u32 s3, s3, s{sT1}")
        S(f"s_and_b32 s{sT1}, s3, 3"); S(f"s_lshl_b32 s{sT1}, s{sT1}, 3"); S(f"s_add_u32 s{sT2}, s{sT2}, s{sT1}")
        S(f"s_mul_i32 s{sT2}, s{sT2}, 1792"); S(f"s_add_u32 s{dst}, s{dst}, s{sT2}")
        S(f"s_lshr_b32 s3, s3, 2"); S(f"s_lshl_b32 s3, s3, 7"); S(f"s_add_u32 s{dst}, s{dst}, s3")
        S(f"s_add_u32 s{dst}, s{dst}, s{sT3}")
    def red(k, nafter, dst):
        acc = 32 + 4 * k
        for i in range(8):
            r = 64 + 32 * k + 4 * i
            P.raw(f"s_waitcnt vmcnt({nafter + 7 - i})", "wait")
            P.raw(f"v_mfma_f32_16x16x32_bf16 v[{acc}:{acc+3}], v[12:15], v[{r}:{r+3}], {'0' if i == 0 else f'v[{acc}:{acc+3}]'}", "other")
    def fin(k, dst):
        acc = 32 + 4 * k
        V(f"v_cvt_pk_bf16_f32 v{48+2*k}, v{acc}, v{acc+1}", [f"v{48+2*k}"])
        V(f"v_cvt_pk_bf16_f32 v{49+2*k}, v{acc+2}, v{acc+3}", [f"v{49+2*k}"])
        P.vmem(f"buffer_store_dwordx2 v[{48+2*k}:{49+2*k}], v11, {srd(SRD_OUT)}, s{dst} offen", [], [])
    loads(0); loads(1)
    S(f"s_cmp_ge_u32 s{sT0}, 40"); S("s_cbranch_scc1 L_red2")
    loads(2)
    outoff(0, 90); outoff(1, 91); outoff(2, 92)
    red(0, 16, 90); red(1, 8, 91); red(2, 0, 92)
    fin(0, 90); fin(1, 91)
    P.raw("s_nop 7", "other")
    fin(2, 92)
    S("s_branch L_fin")
    P.lab("L_red2")
    outoff(0, 90); outoff(1, 91)
    red(0, 8, 90); red(1, 0, 91)
    fin(0, 90)
    P.raw("s_nop 7", "other")
    fin(1, 91)
    P.lab("L_fin")

def write_stamps(P, cfg):
    if not cfg.stamps: return
    S, V = P.salu, P.valu
    P.raw("s_waitcnt vmcnt(0)", "wait")
    stamp(P, cfg, 7)
    P.raw("s_waitcnt lgkmcnt(0)", "wait")
    S(f"s_cmp_eq_u32 s{sWave}, 1"); S("s_cbranch_scc1 L_end")
    S(f"s_cmp_eq_u32 s{sWave}, 2"); S("s_cbranch_scc1 L_end")
    S(f"s_add_u32 s{sWs}, s{sWs}, 0x8000000"); S(f"s_addc_u32 s{sWs+1}, s{sWs+1}, 0")
    S(f"s_lshl_b32 s3, s2, 7"); S(f"s_and_b32 s{sT1}, s{sWave}, 1"); S(f"s_lshl_b32 s{sT1}, s{sT1}, 6"); S(f"s_add_u32 s3, s3, s{sT1}")
    V("v_mov_b32 v6, s3", ["v6"])
    for r in range(16): V(f"v_mov_b32 v{8+r}, s{sStamp+r}", [f"v{8+r}"])
    for k in range(4):
        P.raw(f"global_store_dwordx4 v6, v[{8+4*k}:{11+4*k}], s[{sWs}:{sWs+1}] offset:{16*k}", "vmem")

def gen(cfg):
    order = issue_order(cfg)
    slot, need = alloc_slots(order)
    endidx = {}; c = 0
    for it in order:
        c += 28 if (it < NQ and it % 2 == 0) else 16
        endidx[it] = c
    P = Prog()
    prologue(P, cfg)
    consumer(P, cfg, slot, endidx)
    if cfg.s1at == 'outend': stamp(P, cfg, 1)
    tail_setup(P, cfg)
    P.raw("s_waitcnt vmcnt(0)", "wait")
    stamp(P, cfg, 5)
    P.raw("s_barrier", "salu")
    P.salu("s_branch L_join")
    loader(P, cfg, order, slot, need, endidx)
    tail_setup(P, cfg)
    P.raw("s_barrier", "salu")
    P.salu("s_mov_b64 exec, 1")
    P.raw(f"global_atomic_add v20, v21, s[{sDbg}:{sDbg+1}] sc1", "vmem")
    P.lab("L_poll")
    P.raw(f"global_load_dword v22, v20, s[{sDbg}:{sDbg+1}] sc1", "vmem")
    P.raw("s_waitcnt vmcnt(0)", "wait")
    P.valu("v_readfirstlane_b32 s3, v22", ["s3"], ["v22"])
    P.salu("s_cmp_lt_u32 s3, 16"); P.salu("s_cbranch_scc1 L_poll")
    P.salu("s_mov_b64 exec, -1")
    P.lab("L_join")
    P.raw("s_barrier", "salu")
    stamp(P, cfg, 6)
    reduce_part(P, cfg)
    write_stamps(P, cfg)
    P.lab("L_end")
    P.raw("s_endpgm", "salu")
    P.finalize()
    body = P.text()
    for Q in P.tail_blocks:
        Q.finalize(); body += "\n" + Q.text()
    hdr = [f"; fused attention blocks A|B: one workgroup per (block, batch, head); waves 0-2 compute, wave 3 streams",
           "; @launch grid=(256,1,1) block=(256,1,1) lds=163840",
           '.amdgcn_target "amdgcn-amd-amdhsa--gfx950"', ".text", f".globl {NAME}_kernel", ".p2align 8",
           f".type {NAME}_kernel,@function", f"{NAME}_kernel:"]
    ftr = ["  s_endpgm", '.section .rodata,"a"', ".p2align 6", f".amdhsa_kernel {NAME}_kernel",
           "  .amdhsa_next_free_vgpr 512", "  .amdhsa_next_free_sgpr 96", "  .amdhsa_accum_offset 256",
           "  .amdhsa_group_segment_fixed_size 0", "  .amdhsa_kernarg_size 104", "  .amdhsa_user_sgpr_count 2",
           "  .amdhsa_user_sgpr_kernarg_segment_ptr 1", "  .amdhsa_system_sgpr_workgroup_id_x 1", ".end_amdhsa_kernel"]
    return "\n".join(hdr) + "\n" + body + "\n" + "\n".join(ftr) + "\n", P

if __name__ == "__main__":
    out = sys.argv[1]
    kw = {}
    for a in sys.argv[2:]:
        k, v = a.split("=", 1)
        kw[k] = eval(v)
    txt, P = gen(Cfg(**kw))
    open(out, "w").write(txt)
    print(out, len(txt), "bytes", dict(P.stats()))
```

```python
import sys, math, struct
from asmlib import Prog, R, F
NAME = "concat_heads__mha_block_cached__gqa_block_cached__near_ridge"
UNIT = 4096
NU = 39
FLAG = NU * UNIT
PART = 86016

def f32bits(x):
    return struct.unpack("<I", struct.pack("<f", x))[0]

class Cfg:
    PD = 6
    D_kv = 48
    D_w = 32
    kfirst = 0
    nin = 0
    ck = (3, 6)
    lastsplit = True
    cklag = 2
    clr_at = 1
    arr_at = ('K', 2)
    arrmode = 'atomic'
    arrsh = 4
    tok_at = ('Q', 4)
    tokrd = ('Q', 13)
    tokpol = " sc1"
    own = True
    otpol = ""
    sm = None
    smc = 0
    smr = (14, 44)
    opol0 = None
    nored = False
    nostore = False
    noflag = False
    kmix = ()
    oearly = ()
    o3early = 0
    stamps = False
    touch = False
    wtouch = True
    nxb = 4
    wpol = " nt"
    xpol = ""
    opol = " nt"
    tpol = " nt"
    otouch_at = ('Q', 2)
    slowstep = 8
    order = None
    nosync = False
    noload = False
    cyc = False
    ncode = 1
    pairwait = True
    early = False
    s1at = 'first'
    pollgap = 0
    rot2 = True
    plines = 1
    toreg = False
    earlybar = False
    cst = None
    lst = None
    def __init__(self, **kw):
        for k, v in kw.items():
            assert hasattr(Cfg, k), k
            setattr(self, k, v)

sX, sK, sV, sWq, sWo, sWs, sOut, sDbg = 4, 6, 8, 10, 12, 14, 16, 18
SRD_K, SRD_V, SRD_W, SRD_X, SRD_O, SRD_P, SRD_G, SRD_OUT = 24, 28, 32, 36, 40, 44, 48, 52
SRD_F, SRD_D = 96, 28
FLG = 0x4000000
sRotO = 100
sB, sWhich, sH, sGrp, sWave = 56, 57, 58, 59, 60
sFlag, sPub, sOff, sRot, sOffW, sOffX, sC, sNC, sT0 = 61, 62, 63, 64, 65, 66, 67, 68, 69
sStamp = 70
sT1, sT2, sT3 = 86, 87, 88
sNeed, sCnt, sRet = 89, 93, 94
sPc = 22

def srd(n): return f"s[{n}:{n+3}]"

Qi = lambda i: ('Q', i)
Ki = lambda t: ('K', t)
Vi = lambda q, j: ('V', q, j)
Oi = lambda q, n: ('O', q, n)

def cons_order(cfg):
    o = [Qi(i) for i in range(14)] + [Ki(t) for t in range(16)]
    o += [Vi(0, j) for j in range(4)]
    for q in range(1, 4):
        o += [Vi(q, 0)] + ([Oi(q - 1, n) for n in range(7)] if q - 1 < cfg.nin else []) + [Vi(q, j) for j in range(1, 4)]
    o += [Oi(q, n) for n in range(7) for q in range(cfg.nin, 4)]
    return o

def issue_order(cfg):
    if cfg.order: return list(cfg.order)
    o = [Ki(t) for t in range(cfg.kfirst)]
    nk = cfg.kfirst
    mix = dict(cfg.kmix)
    for i in range(14):
        o.append(Qi(i))
        for _ in range(mix.get(i, 0)):
            o.append(Ki(nk)); nk += 1
    o += [Ki(t) for t in range(nk, 16)]
    rest = cons_order(cfg)[30:]
    fin = rest[rest.index(Vi(3, 3)) + 1:]
    for at, cnt in cfg.oearly:
        e = fin[:cnt]; fin = fin[cnt:]
        rest = [x for x in rest if x not in e]
        p = rest.index(at) + 1
        rest = rest[:p] + e + rest[p:]
    return o + rest

def parts(it):
    if it[0] == 'Q': return ([('x', 3)] if it[1] % 2 == 0 else []) + [('m', 4)]
    if it[0] == 'O': return [('m', 2)]
    if it[0] in 'TP': return [('m', 1)]
    return [('m', 4)]

def alloc(order, ci, nxb):
    occ = [-1] * NU
    loc, need = {}, {}
    issued = set(); done = set()
    for it in order:
        p = -1
        for nm, n in parts(it):
            best = None
            for s in (range(NU - n + 1) if nm != 'x' else [NU - 3 * (k + 1) for k in range(nxb)]):
                if nm != 'x' and Qi(12) not in done and s + n > NU - 3 * nxb: continue
                seg = occ[s:s + n]
                cross = (s * UNIT) // 65536 != ((s + n) * UNIT - 1) // 65536
                key = (max(seg), cross, sum(max(seg) - x for x in seg), (s % 4 != 0) if n == 4 else (-s if nm == 'x' else s % 2), s)
                if best is None or key < best[0]: best = (key, s)
            s = best[1]
            p = max(p, max(occ[s:s + n]))
            for u in range(s, s + n): occ[u] = ci[it]
            loc[(it, nm)] = s * UNIT
        need[it] = p
        assert all(j in issued for j in range(p + 1)), (it, p)
        issued.add(ci[it]); done.add(it)
    return loc, need

def stamp(P, cfg, i):
    if cfg.stamps:
        P.raw(f"{'s_memtime' if cfg.cyc else 's_memrealtime'} s[{sStamp+2*i}:{sStamp+2*i+1}]", "salu")

def prologue(P, cfg):
    S = P.salu
    S("s_cmp_ge_u32 s2, 256"); S("s_cbranch_scc1 L_end")
    stamp(P, cfg, 0)
    S(f"s_bfe_u32 s{sWhich}, s2, 0x10002")
    S(f"s_mul_i32 s3, s{sWhich}, 40")
    S("s_add_u32 s20, s0, s3"); S("s_addc_u32 s21, s1, 0")
    S(f"s_load_dwordx8 s[4:11], s[20:21], 0")
    S(f"s_load_dwordx2 s[12:13], s[20:21], 32")
    S(f"s_load_dwordx2 s[14:15], s[0:1], 96")
    S(f"s_load_dwordx4 s[16:19], s[0:1], 80")
    P.valu("v_lshrrev_b32 v3, 6, v0", ["v3"], ["v0"])
    S(f"s_bfe_u32 s{sB}, s2, 0x30003")
    if cfg.ncode:
        S(f"s_getpc_b64 s[{sPc}:{sPc+1}]")
        P.lab("L_pc")
        S(f"s_lshl_b32 s3, s{sB}, 13")
        P.valu("v_lshl_add_u32 v6, v0, 5, s3", ["v6"], ["v0"])
        for i in range(cfg.ncode):
            if i: P.valu("v_add_u32 v6, 0x10000, v6", ["v6"], ["v6"])
            P.valu("v_min_u32 v7, L_codeend-L_pc-4, v6", ["v7"], ["v6"])
            P.vmem(f"global_load_dword a{72+i}, v7, s[{sPc}:{sPc+1}]", [f"a{72+i}"], ["v7"])
    S(f"s_and_b32 s{sH}, s2, 3"); S(f"s_lshl_b32 s{sH}, s{sH}, 2")
    S(f"s_lshr_b32 s3, s2, 6"); S(f"s_add_u32 s{sH}, s{sH}, s3")
    P.valu(f"v_readfirstlane_b32 s{sWave}, v3", [f"s{sWave}"], ["v3"])
    P.valu("v_and_b32 v0, 63, v0", ["v0"], ["v0"])
    S(f"s_lshl_b32 s{sGrp}, s{sWhich}, 3"); S(f"s_add_u32 s{sGrp}, s{sGrp}, s{sB}")
    if cfg.rot2:
        S(f"s_lshl_b32 s3, s3, 1"); S(f"s_add_u32 s{sRot}, s{sB}, s3")
        S(f"s_sub_u32 s3, s{sRot}, 7"); S(f"s_cselect_b32 s{sRot}, s{sRot}, s3")
    else:
        S(f"s_cmp_eq_u32 s{sB}, 7"); S(f"s_cselect_b32 s{sRot}, 0, s{sB}")
    S(f"s_cmp_eq_u32 s{sB}, 7"); S(f"s_cselect_b32 s{sRotO}, 0, s{sB}")
    P.valu("v_lshlrev_b32 v2, 4, v0", ["v2"], ["v0"])
    P.valu(f"v_add_u32 v2, {FLAG}, v2", ["v2"], ["v2"])
    S(f"s_lshl_b32 s3, s{sWave}, 2")
    P.valu(f"v_add_u32 v1, s3, v2", ["v1"], ["v2"])
    P.valu(f"v_mov_b32 v2, {FLAG}", ["v2"])
    P.valu("v_mov_b32 v4, 0", ["v4"])
    P.ds("ds_write_b32 v1, v4", [], ["v1", "v4"])
    P.ds("ds_write_b32 v1, v4 offset:1024", [], ["v1", "v4"])
    S(f"s_lshl_b32 s3, s{sB}, 4"); S(f"s_add_u32 s3, s3, s{sH}"); S(f"s_lshl_b32 s{sT0}, s3, 18")
    S(f"s_cmp_lg_u32 s{sWave}, 3"); S("s_cbranch_scc1 L_cons")

def mk_srd(P, dst, base, off, size):
    S = P.salu
    if off is None:
        S(f"s_mov_b32 s{dst}, s{base}"); S(f"s_mov_b32 s{dst+1}, s{base+1}")
    else:
        S(f"s_add_u32 s{dst}, s{base}, {off}"); S(f"s_addc_u32 s{dst+1}, s{base+1}, 0")
    S(f"s_mov_b32 s{dst+2}, {size}"); S(f"s_mov_b32 s{dst+3}, 0x20000")
def srd_w(P):
    P.salu(f"s_lshl_b32 s3, s{sH}, 9"); mk_srd(P, SRD_W, sWq, "s3", 447 * 8192 + 512)
def srd_x(P):
    P.salu(f"s_mul_i32 s3, s{sB}, 86016"); mk_srd(P, SRD_X, sX, "s3", 86016)
def srd_o(P):
    P.salu(f"s_mul_i32 s3, s{sH}, {256*896}"); mk_srd(P, SRD_O, sWo, "s3", 256 * 896)

def srd_f(P):
    P.salu(f"s_lshl_b32 s3, s{sGrp}, 11"); P.salu(f"s_add_u32 s3, s3, {FLG}"); mk_srd(P, SRD_F, sWs, "s3", 2048)
def tok_off(P):
    S = P.salu
    S(f"s_lshr_b32 s3, s{sB}, 2"); S(f"s_lshl_b32 s3, s3, 1"); S(f"s_add_u32 s3, s3, s{sWhich}"); S(f"s_lshl_b32 s3, s3, 2")
    S(f"s_and_b32 s20, s{sB}, 3"); S(f"s_add_u32 s3, s3, s20"); S(f"s_lshl_b32 s3, s3, 4")

def sm_list(cfg):
    if cfg.sm == 'a': return [128 * i for i in range(224)]
    if cfg.sm == 'b': return [64 * i for i in range(448)]
    return [256 * i + 124 for i in range(112)]
def sm_base(P, extra=None):
    S = P.salu
    S(f"s_mul_i32 s3, s{sH}, {256*896}"); S(f"s_mul_i32 s20, s{sB}, 28672"); S("s_add_u32 s3, s3, s20")
    if extra: S(f"s_mul_i32 s20, s{sWave}, {extra}"); S("s_add_u32 s3, s3, s20")
    S(f"s_add_u32 s22, s{sWo}, s3"); S(f"s_addc_u32 s23, s{sWo+1}, 0")
def sm_load(P, cfg, off):
    P.raw(f"s_load_dwordx2 s[20:21], s[22:23], {off}" if cfg.sm == 'c' else f"s_load_dword s20, s[22:23], {off}", "salu")

def lname(it): return "_".join(str(x) for x in it)

def loader(P, cfg, order, loc, need, before_drain=None):
    S, V = P.salu, P.valu
    P.lab("L_loader")
    P.ds_q = []
    V("v_lshrrev_b32 v5, 5, v0", ["v5"], ["v0"])
    V("v_and_b32 v6, 31, v0", ["v6"], ["v0"])
    V("v_lshlrev_b32 v7, 9, v5", ["v7"], ["v5"])
    for t in range(8):
        V(f"v_add_u32 v3, {2*t}, v5", ["v3"], ["v5"])
        V(f"v_xor_b32 v3, v3, v6", ["v3"], ["v3", "v6"])
        V(f"v_lshl_add_u32 v{8+t}, v3, 4, v7", [f"v{8+t}"], ["v3", "v7"])
    P.raw("s_waitcnt lgkmcnt(0)", "wait")
    mk_srd(P, SRD_K, sK, f"s{sT0}", 262144)
    if cfg.early: stamp(P, cfg, 1)
    st = dict(c=0, done=0, pub=0, barrier=False, pre=False)
    ends = []
    def crossed(done):
        e = [e for it, e in ends if e <= done]
        return max(e) if e else 0
    def publish(n):
        V(f"v_mov_b32 v4, {n}", ["v4"])
        P.ds("ds_max_i32 v1, v4", [], ["v1", "v4"])
        if cfg.sm: P.ds_q = []
    def need_barrier():
        if not st["barrier"]:
            P.lgkm0(); P.raw("s_barrier", "salu"); st["barrier"] = True
    def pollread(Q):
        Q.ds("ds_read_b96 v[32:34], v2", ["v32", "v33", "v34"], ["v2"])
        if cfg.sm: Q.ds_q = []
    def polluse(Q):
        Q.valu("v_min3_u32 v35, v32, v33, v34", ["v35"], ["v32", "v33", "v34"])
        Q.valu(f"v_readfirstlane_b32 s{sFlag}, v35", [f"s{sFlag}"], ["v35"])
    Q = Prog(); Q.lab("L_slow")
    def qpoll():
        pollread(Q)
        if cfg.sm: Q.raw("s_nop 15", "other")
        polluse(Q)
        Q.salu(f"s_cmp_gt_u32 s{sFlag}, s{sNeed}"); Q.salu("s_cbranch_scc1 L_slowret")
    qpoll()
    for n in range(56 - cfg.slowstep, -1, -cfg.slowstep):
        Q.raw(f"s_waitcnt vmcnt({n})", "wait")
        Q.salu(f"s_sub_u32 s3, s{sCnt}, {n}")
        Q.valu("v_mov_b32 v4, s3", ["v4"]); Q.ds("ds_max_i32 v1, v4", [], ["v1", "v4"])
        if n == 0: Q.lab("L_slowx")
        qpoll()
    Q.salu("s_branch L_slowx")
    Q.lab("L_slowret")
    Q.salu(f"s_setpc_b64 s[{sRet}:{sRet+1}]")
    P.tail_blocks.append(Q)
    def late_setup():
        mk_srd(P, SRD_V, sV, f"s{sT0}", 262144)
        srd_w(P); srd_x(P); srd_o(P)
        for p in range(2):
            V(f"v_add_u32 v3, {2*p}, v5", ["v3"], ["v5"])
            V("v_lshlrev_b32 v3, 2, v3", ["v3"], ["v3"])
            V("v_xor_b32 v3, v3, v6", ["v3"], ["v3", "v6"])
            V("v_lshlrev_b32 v18, 13, v5", ["v18"], ["v5"])
            V(f"v_lshl_add_u32 v3, v3, 4, v18", ["v3"], ["v3", "v18"])
            V(f"v_add_u32 v{20+p}, {p*15360}, v3", [f"v{20+p}"], ["v3"])
            V(f"v_add_u32 v{22+p}, {(p+2)*15360}, v3", [f"v{22+p}"], ["v3"])
        V("v_lshrrev_b32 v36, 3, v0", ["v36"], ["v0"])
        V("v_mul_u32_u24 v37, 896, v36", ["v37"], ["v36"])
        V("v_and_b32 v38, 7, v0", ["v38"], ["v0"])
        V("v_lshrrev_b32 v35, 4, v0", ["v35"], ["v0"])
        for p in range(2):
            V(f"v_add_u32 v3, {4*p}, v35", ["v3"], ["v35"])
            V("v_xor_b32 v3, v3, v38", ["v3"], ["v3", "v38"])
            V("v_lshl_add_u32 v3, v3, 4, v37", ["v3"], ["v3", "v37"])
            V(f"v_add_u32 v{24+p}, {p*6144}, v3", [f"v{24+p}"], ["v3"])
            V(f"v_add_u32 v{26+p}, {(p+2)*6144}, v3", [f"v{26+p}"], ["v3"])
        V("v_and_b32 v3, 1, v35", ["v3"], ["v35"])
        V("v_lshlrev_b32 v3, 2, v3", ["v3"], ["v3"])
        V("v_xor_b32 v3, v3, v38", ["v3"], ["v3", "v38"])
        V("v_lshl_add_u32 v28, v3, 4, v37", ["v28"], ["v3", "v37"])
        V("v_lshlrev_b32 v36, 9, v36", ["v36"], ["v36"])
        V("v_lshl_add_u32 v16, v3, 4, v36", ["v16"], ["v3", "v36"])
        for j in range(1, 4):
            V(f"v_add_u32 v{28+j}, {j*6144}, v28", [f"v{28+j}"], ["v28"])
            V(f"v_add_u32 v{16+j}, {j*3072}, v16", [f"v{16+j}"], ["v16"])
        S(f"s_mov_b32 s{sFlag}, 0")
        S(f"s_mov_b32 s{sT1}, s{sRot}")
        if cfg.sm:
            for r in (32, 33, 34): V(f"v_mov_b32 v{r}, 0", [f"v{r}"])
            sm_base(P)
    did_setup = False
    def group(lds, srdn, soff_setup, vregs, pol):
        S(f"s_mov_b32 m0, {lds}", ["m0"])
        soff_setup()
        for j, vr in enumerate(vregs):
            if cfg.toreg: P.vmem(f"buffer_load_dwordx4 a[{(st['c']%60)*4}:{(st['c']%60)*4+3}], v{vr}, {srd(srdn)}, s{sOff} offen offset:{j*1024}{pol}", [], [f"v{vr}"])
            elif not cfg.noload: P.vmem(f"buffer_load_dwordx4 v{vr}, {srd(srdn)}, s{sOff} offen offset:{j*1024}{pol} lds", [], [f"v{vr}"], dma=True)
            st["c"] += 1
    def after_group(D):
        if st["c"] - st["done"] > D:
            st["done"] = st["c"] - D
            P.raw(f"s_waitcnt vmcnt({D})", "wait")
            n = crossed(st["done"])
            if n > st["pub"]:
                need_barrier(); publish(st["done"]); st["pub"] = n
    known = {"k": -1}
    def eff_need(idx):
        p = need[order[idx]]
        if cfg.nosync or p <= known["k"]: return -1
        return p
    def prefetch_flags(idx):
        if idx + 1 < len(order) and eff_need(idx + 1) >= 0:
            need_barrier(); pollread(P); st["pre"] = True
    smq = {}
    if cfg.sm:
        L = sm_list(cfg)[3 * cfg.smc:]
        slots = [(i, g) for i in range(*cfg.smr) for g in range(2 if order[i][0] == 'O' else 4)]
        for j, off in enumerate(L): smq.setdefault(slots[j * len(slots) // len(L)], []).append(off)
    for idx, it in enumerate(order):
        if not did_setup and (it[0] != 'K' or idx >= 2):
            late_setup(); did_setup = True
        p = eff_need(idx)
        if p >= 0:
            assert st["pre"]; st["pre"] = False
            polluse(P)
            S(f"s_cmp_gt_u32 s{sFlag}, {p}"); S(f"s_cbranch_scc1 L_lb{lname(it)}")
            S(f"s_mov_b32 s{sNeed}, {p}"); S(f"s_mov_b32 s{sCnt}, {st['c']}")
            S(f"s_call_b64 s[{sRet}:{sRet+1}], L_slow")
            P.lab(f"L_lb{lname(it)}")
            P.ds_q = []
            known["k"] = p
        base = loc[(it, 'm')]
        def run(ng, srdn, so, vr, pol, D):
            for g in range(ng):
                if g == ng - 1: prefetch_flags(idx)
                group(base + g * 4096, srdn, lambda: so(g), vr(g), pol)
                for off in smq.get((idx, g), []): sm_load(P, cfg, off)
                if g == ng - 1: ends.append((it, st["c"]))
                after_group(D)
        if it[0] == 'T':
            V("v_lshlrev_b32 v3, 7, v0", ["v3"], ["v0"])
            S(f"s_mul_i32 s{sOff}, s{sB}, {32*896}")
            for i in range(4):
                P.vmem(f"buffer_load_dword a{64+i}, v3, {srd(SRD_O)}, s{sOff} offen{cfg.tpol}", [f"a{64+i}"], ["v3"])
                S(f"s_add_u32 s{sOff}, s{sOff}, 8192")
                st["c"] += 1
            ends.append((it, st["c"]))
            after_group(cfg.D_kv)
        elif it[0] == 'P':
            V(f"v_and_b32 v3, {cfg.plines-1}, v0", ["v3"], ["v0"])
            V(f"v_mul_u32_u24 v3, {229376//cfg.plines}, v3", ["v3"], ["v3"])
            for i, sr in enumerate((SRD_K, SRD_V, SRD_O, SRD_V)):
                P.vmem(f"buffer_load_dword a{68+i}, v3, {srd(sr)}, 0 offen nt", [f"a{68+i}"], ["v3"])
                st["c"] += 1
            ends.append((it, st["c"]))
            after_group(cfg.D_kv)
        elif it[0] == 'Q':
            i = it[1]; D = cfg.D_w
            if i % 2 == 0:
                S(f"s_lshl_b32 s{sOffW}, s{sT1}, 19"); S(f"s_lshl_b32 s{sOffX}, s{sT1}, 7")
                S(f"s_add_u32 s{sT1}, s{sT1}, 1"); S(f"s_cmp_eq_u32 s{sT1}, 7"); S(f"s_cselect_b32 s{sT1}, 0, s{sT1}")
                for g in range(3):
                    group(loc[(it, 'x')] + g * 4096, SRD_X, lambda: S(f"s_add_u32 s{sOff}, s{sOffX}, {g*28672}"), [24, 25, 26, 27], cfg.xpol)
                    after_group(D)
            run(4, SRD_W, lambda g: S(f"s_add_u32 s{sOff}, s{sOffW}, {(i&1)*262144 + g*65536}"), lambda g: [20, 21, 22, 23], cfg.wpol, D)
        elif it[0] == 'K':
            t = it[1]
            run(4, SRD_K, lambda g: S(f"s_mov_b32 s{sOff}, {t*16384 + g*4096}"), lambda g: [8 + 4 * (g & 1) + j for j in range(4)], " nt", cfg.D_kv)
        elif it[0] == 'U':
            t = it[1]
            run(4, SRD_V, lambda g: S(f"s_mov_b32 s{sOff}, {t*16384 + g*4096}"), lambda g: [8 + 4 * (g & 1) + j for j in range(4)], " nt", cfg.D_kv)
            if t == 15: stamp(P, cfg, 3)
        elif it[0] == 'V':
            q, j = it[1], it[2]
            run(4, SRD_V, lambda g: S(f"s_mov_b32 s{sOff}, {(128*j + 32*g)*512 + q*128}"), lambda g: [16, 17, 18, 19], " nt", cfg.D_kv)
        else:
            q = it[1]
            D = cfg.D_w if all(x[0] == 'O' for x in order[idx:]) else cfg.D_kv
            if st.get("ocol") != it[2]:
                st["ocol"] = it[2]
                S(f"s_add_u32 s{sT2}, s{sRotO}, {it[2]}"); S(f"s_sub_u32 s3, s{sT2}, 7"); S(f"s_cselect_b32 s{sT2}, s{sT2}, s3")
                S(f"s_lshl_b32 s{sT2}, s{sT2}, 7")
            run(2, SRD_O, lambda g: S(f"s_add_u32 s{sOff}, s{sT2}, {(64*q + 32*g)*896}"), lambda g: [28, 29, 30, 31], cfg.opol0 if (it[2] == 0 and cfg.opol0 is not None) else cfg.opol, D)
        if it == cfg.tokrd:
            srd_f(P); tok_off(P)
            V("v_mov_b32 v53, s3", ["v53"])
            P.vmem(f"global_load_dword v54, v53, s[{sDbg}:{sDbg+1}]{cfg.tokpol}", ["v54"], ["v53"])
            st["c"] += 1; st["tok"] = st["c"]
        if it == Vi(3, 2) and cfg.arrmode != 'none':
            assert st["done"] >= st["tok"]
            P.lab("L_arr")
            V("v_cmp_eq_u32 vcc, 0, v54", ["vcc"], ["v54"])
            S("s_cbranch_vccnz L_arrx")
            T = Prog(); P.tail_blocks.append(T)
            T.lab("L_arrx")
            T.raw(f"global_load_dword v54, v53, s[{sDbg}:{sDbg+1}] sc1"); T.raw("s_waitcnt vmcnt(0)"); T.raw("s_branch L_arr")
        if cfg.earlybar: need_barrier()
        if cfg.lst:
            if it in cfg.lst: stamp(P, cfg, 1 + cfg.lst.index(it))
        elif cfg.early:
            if it == Qi(0): stamp(P, cfg, 2)
            if it == Qi(3): stamp(P, cfg, 3)
        else:
            if it == Qi(13): stamp(P, cfg, 1)
            if it == Ki(15): stamp(P, cfg, 2)
            if it == Vi(3, 3): stamp(P, cfg, 3)
    if not cfg.lst: stamp(P, cfg, 4)
    if before_drain: st["c"] += before_drain()
    for it, e in ends:
        if e > st["pub"]:
            if e > st["done"]:
                st["done"] = e
                P.raw(f"s_waitcnt vmcnt({st['c']-e})", "wait")
            publish(st["done"]); st["pub"] = e
    return dict(ends)

class AddrReg:
    def __init__(self, reg): self.reg = reg; self.base = 0
RING = 224
VS = 32
VQ = 64
VP = 128
HIST = 32
def consumer(P, cfg, corder, loc, endidx, lastrel):
    S, V = P.salu, P.valu
    P.raw("s_waitcnt lgkmcnt(0)", "wait"); P.ds_q = []
    if cfg.sm and cfg.smc:
        L = sm_list(cfg)
        sm_base(P, L[cfg.smc] - L[0])
        for off in L[:cfg.smc]: sm_load(P, cfg, off)
    if cfg.touch:
        srd_w(P); srd_x(P); srd_o(P)
        S(f"s_cmp_eq_u32 s{sWave}, 1"); S("s_cbranch_scc1 L_t1")
        S(f"s_cmp_eq_u32 s{sWave}, 2"); S("s_cbranch_scc1 L_t2")
        V("v_lshrrev_b32 v6, 2, v0", ["v6"], ["v0"]); V("v_lshlrev_b32 v6, 13, v6", ["v6"], ["v6"])
        V("v_and_b32 v7, 3, v0", ["v7"], ["v0"]); V("v_lshl_add_u32 v6, v7, 7, v6", ["v6"], ["v6", "v7"])
        S(f"s_mul_i32 s{sOff}, s{sB}, {56*8192}")
        for i in range(4 if cfg.wtouch else 0):
            P.vmem(f"buffer_load_dword a{64+i}, v6, {srd(SRD_W)}, s{sOff} offen{cfg.tpol}", [f"a{64+i}"], ["v6"])
            S(f"s_add_u32 s{sOff}, s{sOff}, {16*8192}")
        S("s_branch L_t2")
        P.lab("L_t1")
        V("v_lshlrev_b32 v6, 7, v0", ["v6"], ["v0"])
        S(f"s_and_b32 s{sOff}, s{sH}, 3"); S(f"s_mul_i32 s{sOff}, s{sOff}, {168*128}")
        for i in range(3):
            P.vmem(f"buffer_load_dword a{64+i}, v6, {srd(SRD_X)}, s{sOff} offen{cfg.tpol}", [f"a{64+i}"], ["v6"])
            S(f"s_add_u32 s{sOff}, s{sOff}, 8192")
        P.lab("L_t2")
    V("v_and_b32 v36, 31, v0", ["v36"], ["v0"])
    V("v_lshrrev_b32 v37, 5, v0", ["v37"], ["v0"])
    V("v_bfe_u32 v38, v0, 4, 1", ["v38"], ["v0"])
    V("v_bfe_u32 v39, v0, 2, 2", ["v39"], ["v0"])
    V("v_and_b32 v40, 3, v0", ["v40"], ["v0"])
    V("v_bfe_u32 v41, v0, 1, 1", ["v41"], ["v0"])
    V("v_and_b32 v42, 1, v0", ["v42"], ["v0"])
    V("v_lshl_add_u32 v41, v42, 1, v41", ["v41"], ["v41", "v42"])
    V("v_lshl_add_u32 v45, v37, 3, v39", ["v45"], ["v37", "v39"])
    V("v_lshlrev_b32 v45, 9, v45", ["v45"], ["v45"])
    V("v_lshl_add_u32 v45, v38, 5, v45", ["v45"], ["v38", "v45"])
    V("v_lshl_add_u32 v45, v41, 3, v45", ["v45"], ["v41", "v45"])
    for d3 in range(4):
        V(f"v_xor_b32 v44, {d3}, v39", ["v44"], ["v39"])
        V(f"v_lshl_add_u32 v{20+d3}, v44, 6, v45", [f"v{20+d3}"], ["v44", "v45"])
    S(f"s_lshl_b32 s3, s{sWave}, 12")
    V("v_lshlrev_b32 v43, 7, v36", ["v43"], ["v36"])
    V("v_add_u32 v43, s3, v43", ["v43"], ["v43"])
    V("v_bfe_u32 v42, v36, 1, 3", ["v42"], ["v36"])
    for s in range(4):
        V(f"v_add_u32 v44, {2*s}, v37", ["v44"], ["v37"])
        V("v_xor_b32 v44, v44, v42", ["v44"], ["v44", "v42"])
        V(f"v_lshl_add_u32 v{24+s}, v44, 4, v43", [f"v{24+s}"], ["v44", "v43"])
    V("v_and_b32 v42, 15, v36", ["v42"], ["v36"])
    V("v_lshlrev_b32 v43, 9, v36", ["v43"], ["v36"])
    for s7 in range(8):
        V(f"v_add_u32 v44, {2*s7}, v37", ["v44"], ["v37"])
        V("v_xor_b32 v44, v44, v42", ["v44"], ["v44", "v42"])
        V(f"v_lshl_add_u32 v{8+s7}, v44, 4, v43", [f"v{8+s7}"], ["v44", "v43"])
    V("v_lshl_add_u32 v42, v37, 2, v39", ["v42"], ["v37", "v39"])
    V("v_lshlrev_b32 v43, 7, v42", ["v43"], ["v42"])
    V("v_lshl_add_u32 v43, v38, 5, v43", ["v43"], ["v38", "v43"])
    V("v_lshrrev_b32 v44, 1, v39", ["v44"], ["v39"])
    V("v_lshl_add_u32 v43, v44, 6, v43", ["v43"], ["v44", "v43"])
    V("v_lshl_add_u32 v16, v40, 3, v43", ["v16"], ["v40", "v43"])
    V("v_xor_b32 v17, 64, v16", ["v17"], ["v16"])
    V("v_lshl_add_u32 v28, v41, 3, v43", ["v28"], ["v41", "v43"])
    V("v_xor_b32 v29, 64, v28", ["v29"], ["v28"])
    V("v_lshrrev_b32 v42, 2, v36", ["v42"], ["v36"])
    V("v_lshlrev_b32 v5, 9, v42", ["v5"], ["v42"])
    V("v_lshl_add_u32 v5, v37, 4, v5", ["v5"], ["v37", "v5"])
    V("v_lshl_add_u32 v5, v40, 5, v5", ["v5"], ["v40", "v5"])
    V("v_mov_b32 v4, 1", ["v4"])
    c = math.log2(math.e) / 16.0
    S(f"s_mov_b32 s{sC}, {hex(f32bits(c))}"); S(f"s_mov_b32 s{sNC}, {hex(f32bits(-c))}")
    S(f"s_lshl_b32 s3, s{sGrp}, 4"); S(f"s_add_u32 s3, s3, s{sH}"); S(f"s_mul_i32 s3, s3, {PART}")
    mk_srd(P, SRD_P, sWs, "s3", PART)
    S(f"s_lshl_b32 s{sOffW}, s{sWave}, 12")
    srd_f(P)
    if cfg.otouch_at != -1 and not cfg.touch: srd_o(P)
    mk_srd(P, SRD_D, sDbg, None, 256)

    regs = {r: AddrReg(r) for r in range(8, 30)}
    def addr(reg, off):
        a = regs[reg]
        if not (0 <= off - a.base <= 65535 - 16):
            nb = (off // 65536) * 65536
            d = nb - a.base
            if d > 0: V(f"v_add_u32 v{reg}, {d}, v{reg}", [f"v{reg}"], [f"v{reg}"])
            else: V(f"v_subrev_u32 v{reg}, {-d}, v{reg}", [f"v{reg}"], [f"v{reg}"])
            a.base = nb
        return off - a.base
    def rd128(dst, reg, off):
        o = addr(reg, off)
        P.ds(f"ds_read_b128 {F('a', dst, 4)}, v{reg} offset:{o}", R('a', dst, 4), [f"v{reg}"])
    def rdtr(dst, reg, off):
        o = addr(reg, off)
        P.ds(f"ds_read_b64_tr_b16 {F('a', dst, 2)}, v{reg} offset:{o}", R("a", dst, 2), [f"v{reg}"])

    OFR = [VS, VS + 16, VQ, VQ + 32]
    def oacc(n, nt): return ("v", VP + 32 * (n & 1) + 16 * nt) if cfg.nin == 0 else ("a", 32 * n + 16 * nt)
    M = []
    for it in corder:
        sb = loc[(it, 'm')]
        if it[0] == 'Q':
            i = it[1]
            seq = [(ks, dt) for ks in range(2) for dt in range(8)] if i < 13 else [(ks, dt) for dt in range(8) for ks in range(2)]
            for ks, dt in seq:
                def rd(rb, sb=sb, ks=ks, dt=dt):
                    for pp in range(2): rdtr(rb + 2 * pp, 20 + (dt & 3), sb + ks * 8192 + pp * 2048 + 256 * (dt >> 2))
                xb = 16 * ((i // 2) & 1) + 4 * (2 * (i & 1) + ks)
                d = ("v", VP + 16 * dt)
                M.append(dict(item=it, rd=rd, d=d, b=("a", xb), c=None if (i == 0 and ks == 0) else d))
        elif it[0] == 'K':
            t = it[1]
            for s in range(16):
                def rd(rb, sb=sb, s=s): rd128(rb, 8 + (s & 7), sb + 256 * (s >> 3))
                d = ("v", VS + 16 * (t & 1))
                M.append(dict(item=it, rd=rd, d=d, b=("v", VQ + 4 * s), c=None if s == 0 else d))
        elif it[0] == 'V':
            q, j = it[1], it[2]
            seq = [(ks, dt) for ks in range(8) for dt in range(2)] if it != Vi(3, 3) else [(ks, dt) for dt in range(2) for ks in range(8)]
            for ks, dt in seq:
                def rd(rb, sb=sb, ks=ks, dt=dt):
                    for pp in range(2): rdtr(rb + 2 * pp, 16 + dt, sb + ks * 2048 + pp * 1024)
                d = ("v", VQ + 32 * (q & 1) + 16 * dt)
                M.append(dict(item=it, rd=rd, d=d, b=("v", VP + 32 * j + 4 * ks), c=None if (j == 0 and ks == 0) else d))
        else:
            q, n = it[1], it[2]
            seq = [(kk, nt) for kk in range(4) for nt in range(2)] if (q < 3 or (n == 0 and cfg.nin == 3)) else [(kk, nt) for nt in range(2) for kk in range(4)]
            for kk, nt in seq:
                def rd(rb, sb=sb, kk=kk, nt=nt):
                    for pp in range(2): rdtr(rb + 2 * pp, 28 + nt, sb + kk * 2048 + pp * 1024)
                d = oacc(n, nt)
                M.append(dict(item=it, rd=rd, d=d, nt=nt, b=("v", OFR[q] + 4 * kk), c=None if (q == 0 and kk == 0) else d))
    nl = 8 * (4 - cfg.nin)
    if cfg.lastsplit: M[-nl:] = [m for m in M[-nl:] if m["nt"] == 0] + [m for m in M[-nl:] if m["nt"] == 1]
    N = len(M)
    assert N == 960
    first = {}
    for i, m in enumerate(M): first.setdefault(m["item"], i)
    fill = {i: [] for i in range(-1, N + 1)}
    pre = {i: [] for i in range(N)}
    def spread(ops, g0, g1):
        n = g1 - g0 + 1
        for j, op in enumerate(ops):
            fill[g0 + (j * n) // len(ops)].append(op)
    def vop(text, w, r): return lambda: V(text, w, r)
    def cvt(dst, a): return vop(f"v_cvt_pk_bf16_f32 v{dst}, v{a}, v{a+1}", [f"v{dst}"], [f"v{a}", f"v{a+1}"])
    def accrd(dst, a): return vop(f"v_accvgpr_read_b32 v{dst}, a{a}", [f"v{dst}"], [f"a{a}"])
    f13 = first[Qi(13)]
    for dt in range(8):
        spread([cvt(VQ + 8 * dt + j, VP + 16 * dt + 2 * j) for j in range(8)], f13 + 2 * dt + 4, f13 + 2 * dt + 5)
    def maxops(t):
        sb = VS + 16 * (t & 1)
        ops = []
        for j in range(8):
            a = sb + 2 * j
            if t == 0 and j == 0: ops.append(vop(f"v_max_f32 v6, v{a}, v{a+1}", ["v6"], [f"v{a}", f"v{a+1}"]))
            else: ops.append(vop(f"v_max3_f32 v6, v6, v{a}, v{a+1}", ["v6"], ["v6", f"v{a}", f"v{a+1}"]))
        if t == 15:
            ops.append(vop("v_mov_b32 v18, v6", ["v18"], ["v6"]))
            ops.append(vop("v_permlane32_swap_b32 v18, v6", ["v18", "v6"], ["v18", "v6"]))
            ops.append(vop("v_max_f32 v6, v18, v6", ["v6"], ["v18", "v6"]))
        nm, po = 30 + (t & 1), 30 + ((t + 1) & 1)
        ops.append(vop(f"v_mul_f32 v18, s{sNC}, v6", ["v18"], ["v6"]))
        ops.append(vop(f"v_floor_f32 v{nm}, v18", [f"v{nm}"], ["v18"]))
        return ops
    def resc(t):
        nm, po = 30 + (t & 1), 30 + ((t + 1) & 1)
        ops = []
        if t > 0:
            ops.append(vop(f"v_sub_f32 v18, v{nm}, v{po}", ["v18"], [f"v{nm}", f"v{po}"]))
            ops.append(vop("v_cvt_i32_f32 v18, v18", ["v18"], ["v18"]))
            ops.append(vop("v_ldexp_f32 v7, v7, v18", ["v7"], ["v7", "v18"]))
        if t < 15:
            ops.append(vop(f"v_accvgpr_write_b32 a{HIST+t}, v{nm}", [f"a{HIST+t}"], [f"v{nm}"]))
        return ops
    def pops(t):
        sb = VS + 16 * (t & 1); nm = 30 + (t & 1)
        ops = []
        for h in range(4):
            e = range(sb + 4 * h, sb + 4 * h + 4)
            for a in e: ops.append(vop(f"v_fma_f32 v{a}, v{a}, s{sC}, v{nm}", [f"v{a}"], [f"v{a}", f"v{nm}"]))
            for a in e: ops.append(lambda a=a: P.trans(f"v_exp_f32 v{a}, v{a}", [f"v{a}"], [f"v{a}"]))
            if h > 0: ops += post(t, h - 1)
        ops += post(t, 3)
        return ops
    def post(t, h):
        sb = VS + 16 * (t & 1)
        ops = []
        for j in (2 * h, 2 * h + 1):
            a = sb + 2 * j
            ops.append(cvt(VP + 8 * t + j, a))
            if t == 0 and j == 0:
                ops.append(vop(f"v_add_f32 v7, v{a}, v{a+1}", ["v7"], [f"v{a}", f"v{a+1}"]))
            else:
                ops.append(vop(f"v_add_f32 v7, v7, v{a}", ["v7"], ["v7", f"v{a}"]))
                ops.append(vop(f"v_add_f32 v7, v7, v{a+1}", ["v7"], ["v7", f"v{a+1}"]))
        return ops
    for t in range(15):
        f = first[Ki(t + 1)]
        spread(maxops(t) + resc(t) + pops(t), f + 2, f + 15)
    def corr(t):
        ops = [accrd(19, HIST + t),
               vop("v_sub_f32 v19, v19, v31", ["v19"], ["v19", "v31"]),
               vop("v_cvt_u32_f32 v19, v19", ["v19"], ["v19"]),
               vop("v_min_u32 v19, 0xff, v19", ["v19"], ["v19"]),
               vop("v_mul_u32_u24 v19, 0x800080, v19", ["v19"], ["v19"])]
        for j in range(8):
            a = VP + 8 * t + j
            ops.append(vop(f"v_pk_sub_u16 v{a}, v{a}, v19 clamp", [f"v{a}"], [f"v{a}", "v19"]))
        return ops
    fv0 = first[Vi(0, 0)]
    pre[fv0] += maxops(15) + corr(0)
    if not cfg.cst: pre[fv0].append(lambda: stamp(P, cfg, 3))
    last = resc(15) + pops(15)
    for t in range(1, 15):
        spread(corr(t), fv0 + 4 * (t - 1), fv0 + 4 * (t - 1) + 2)
    spread(last, fv0 + 1, fv0 + 54)
    fin = [vop("v_mov_b32 v18, v7", ["v18"], ["v7"]),
           vop("v_permlane32_swap_b32 v18, v7", ["v18", "v7"], ["v18", "v7"]),
           vop("v_add_f32 v7, v18, v7", ["v7"], ["v18", "v7"]),
           lambda: P.trans("v_rcp_f32 v6, v7", ["v6"], ["v7"])]
    spread(fin, fv0 + 57, fv0 + 60)
    def onorm(q, dt):
        ab = VQ + 32 * (q & 1) + 16 * dt; fb = OFR[q] + 8 * dt
        ops = []
        for j in range(8):
            a = ab + 2 * j
            ops.append(vop(f"v_mul_f32 v{a}, v{a}, v6", [f"v{a}"], [f"v{a}", "v6"]))
            ops.append(vop(f"v_mul_f32 v{a+1}, v{a+1}, v6", [f"v{a+1}"], [f"v{a+1}", "v6"]))
            ops.append(cvt(fb + j, a))
        return ops
    for q in range(3):
        f = first[Vi(q + 1, 0)]
        spread(onorm(q, 0) + onorm(q, 1), f + 2, f + 14)
    f33 = first[Vi(3, 3)]
    spread(onorm(3, 0), f33 + 10, f33 + 14)
    fo3 = first[Oi(cfg.nin, 0)]
    spread(onorm(3, 1), fo3 + 1, fo3 + (3 if cfg.nin == 3 else 6))
    if cfg.otouch_at != -1:
        f = first[cfg.otouch_at] if cfg.otouch_at != 'start' else -1
        def otouch():
            S(f"s_cmp_lg_u32 s{sWave}, 0"); S("s_cbranch_scc1 L_not")
            V("v_lshlrev_b32 v19, 7, v0", ["v19"], ["v0"])
            S(f"s_mul_i32 s{sOff}, s{sB}, {32*896}")
            for i in range(4):
                if i == 3: S("s_mov_b32 exec_hi, 0")
                P.vmem(f"buffer_load_dword a{64+i}, v19, {srd(SRD_O)}, s{sOff} offen{cfg.otpol}", [f"a{64+i}"], ["v19"])
                if i == 3: S("s_mov_b32 exec_hi, -1")
                S(f"s_add_u32 s{sOff}, s{sOff}, 8192")
            P.lab("L_not")
        fill[f].append(otouch)
    vm = {"n": 0}
    def lead(lbl):
        S(f"s_and_b32 s3, s{sB}, 3"); S(f"s_lshl_b32 s3, s3, 2"); S(f"s_add_u32 s3, s3, 16")
        S(f"s_lshl_b32 s20, s{sWave}, 4"); S(f"s_add_u32 s20, s20, s{sH}")
        S(f"s_cmp_lg_u32 s20, s3"); S(f"s_cbranch_scc1 {lbl}")
    def clear():
        lead("L_nc")
        V("v_lshlrev_b32 v19, 4, v0", ["v19"], ["v0"])
        V("v_mov_b32 v32, 0", ["v32"])
        for i in range(2):
            P.vmem(f"buffer_store_dwordx4 v[32:35], v19, {srd(SRD_F)}, 0 offen offset:{1024*i} sc1", [], ["v32", "v19"])
        P.lab("L_nc")
    def report():
        lead("L_nr")
        tok_off(P)
        V(f"v_lshl_add_u32 v19, v0, 8, s3", ["v19"], ["v0"])
        P.raw("s_waitcnt vmcnt(0)", "wait")
        P.vmem(f"buffer_store_dword v4, v19, {srd(SRD_D)}, 0 offen sc1", [], ["v4", "v19"])
        P.lab("L_nr")
    fill[-1].append(clear)
    fill[first[cfg.tok_at]].append(report)
    if cfg.nin: pre[first[Oi(0, 0)]].append(lambda: P.raw("s_waitcnt vmcnt(0)", "wait"))
    stored = {}
    def epi(n, nt):
        af, ab = oacc(n, nt)
        tb = VP + 24 * ((2 * n + nt) % 4)
        ops = []
        for j in range(2):
            if af == "a":
                for x in range(8): ops.append(accrd(tb + 8 * j + x, ab + 8 * j + x))
                dd = tb + 16 + 4 * j; src = tb + 8 * j
            else:
                dd = VP + 64 + 8 * ((2 * n + nt) % 8) + 4 * j; src = ab + 8 * j
            for x in range(4): ops.append(cvt(dd + x, src + 2 * x))
            def st_(dd=dd, j=j):
                if not cfg.nostore: P.vmem(f"buffer_store_dwordx4 v[{dd}:{dd+3}], v5, {srd(SRD_P)}, s{sOff} offen offset:{(2*nt+j)*128} sc1",
                       [], R("v", dd, 4) + ["v5"], wide_store=R("v", dd, 4))
                vm["n"] += 1; stored[n] = vm["n"]
            ops.append(st_)
        return ops
    def epi_off():
        S(f"s_mul_i32 s{sOff}, s{sRotO}, 12288"); S(f"s_add_u32 s{sOff}, s{sOff}, s{sOffW}")
        S(f"s_add_u32 s{sRotO}, s{sRotO}, 1"); S(f"s_cmp_eq_u32 s{sRotO}, 7"); S(f"s_cselect_b32 s{sRotO}, 0, s{sRotO}")
    def flagsetup():
        S(f"s_lshl_b32 s3, s{sH}, 7")
        V(f"v_lshl_add_u32 v19, v0, 4, s3", ["v19"], ["v0"])
        V(f"v_cmp_gt_u32 s[{sOffX}:{sOffX+1}], 8, v0", [f"s{sOffX}"], ["v0"])
        V(f"v_cndmask_b32 v19, v2, v19, s[{sOffX}:{sOffX+1}]", ["v19"], ["v2", "v19", f"s{sOffX}"])
        V(f"v_lshl_add_u32 v30, v0, 4, v2", ["v30"], ["v0", "v2"])
    def flag(k):
        c = cfg.ck[k]
        assert k == 0 or cfg.noflag or vm[k - 1] <= stored[c]
        P.raw(f"s_waitcnt vmcnt({vm['n'] - stored[c]})", "wait")
        if k == len(cfg.ck) - 1 and not cfg.cst: stamp(P, cfg, 5)
        if cfg.noflag: return
        V(f"v_mov_b32 v8, {k+1}", ["v8"])
        P.ds(f"ds_add_rtn_u32 v18, v30, v4 offset:{1024+4*k}", ["v18"], ["v30", "v4"])
    def flag2(k):
        if cfg.noflag: return
        V(f"v_cmp_eq_u32 s[{sOffX}:{sOffX+1}], 2, v18", [f"s{sOffX}"], ["v18"])
        V(f"v_cndmask_b32 v18, v2, v19, s[{sOffX}:{sOffX+1}]", ["v18"], ["v2", "v19", f"s{sOffX}"])
        P.vmem(f"buffer_store_dwordx4 v[8:11], v18, {srd(SRD_F)}, 0 offen sc1", [], ["v18", "v8"], wide_store=R("v", 8, 4))
        vm["n"] += 1; vm[k] = vm["n"]
    fill[fo3 + 7].append(flagsetup)
    tend = {}
    for i in range(fo3, N): tend[(M[i]["item"][2], M[i]["nt"])] = i
    w = 4 if cfg.nin else 2
    lastfill = fo3 + 7
    for n in range(7):
        for nt in range(2):
            g0 = max(tend[(n, nt)] + 2, lastfill + 1); g1 = g0 + w - 1
            ops = ([epi_off] if nt == 0 else []) + epi(n, nt)
            if g1 > N - 1: g1 = N - 1
            if g0 > N - 1: g0 = N - 1
            spread(ops, g0, g1); lastfill = g1
    for k, c in enumerate(cfg.ck):
        at = min(fo3 + nl * (c + 1 + cfg.cklag) + 1, N - 1)
        fill[at].append(lambda k=k: flag(k))
        fill[min(at + 3, N - 1)].append(lambda k=k: flag2(k))
    if cfg.cst:
        for k, it in enumerate(cfg.cst): pre[first[it]].append(lambda k=k: stamp(P, cfg, 1 + k))
    else:
        pre[first[Ki(0)]].append(lambda: stamp(P, cfg, 2))
        pre[fo3].append(lambda: stamp(P, cfg, 4))

    stubs = Prog(); P.tail_blocks.append(stubs)
    seen = {"thr": 0}
    chk = {}
    for it in corder:
        if endidx[it] > seen["thr"] and not cfg.nosync:
            chk[it] = endidx[it]; seen["thr"] = endidx[it]
    def flagread(): P.ds("ds_read_b32 v3, v2 offset:12", ["v3"], ["v2"])
    def cmp(it): V(f"v_cmp_le_u32 vcc, {chk[it]}, v3", ["vcc"], ["v3"])
    def branch(it):
        nm = lname(it)
        S(f"s_cbranch_vccz L_cs{nm}")
        P.lab(f"L_cb{nm}")
        stubs.lab(f"L_cs{nm}")
        stubs.raw("ds_read_b32 v3, v2 offset:12"); stubs.raw("s_waitcnt lgkmcnt(0)")
        stubs.raw(f"v_cmp_le_u32 vcc, {chk[it]}, v3"); stubs.raw(f"s_cbranch_vccz L_cs{nm}"); stubs.raw(f"s_branch L_cb{nm}")
    ci = {it: i for i, it in enumerate(corder)}
    xq = []
    def starts(j): return j < N and first[M[j]["item"]] == j
    def reads(j):
        m = M[j]; it = m["item"]
        if first[it] == j:
            if 0 < ci[it] <= lastrel + 1: P.ds("ds_add_u32 v1, v4", [], ["v1", "v4"])
            if it in chk: branch(it)
            if j == 0 and cfg.s1at == 'first' and not cfg.cst: stamp(P, cfg, 1)
            if it[0] == 'Q' and it[1] % 2 == 0:
                for s in range(4): xq.append((16 * ((it[1] // 2) & 1) + 4 * s, 24 + s, loc[(it, 'x')]))
        if xq: rd128(*xq.pop(0))
        m["rd"](RING + 4 * (j % 8))
        if starts(j + 4) and M[j + 4]["item"] in chk: flagread()
        if starts(j + 1) and M[j + 1]["item"] in chk: cmp(M[j + 1]["item"])
    for op in fill[-1]: op()
    P.raw("s_barrier", "salu")
    if corder[0] in chk:
        flagread(); cmp(corder[0])
    for j in range(cfg.PD): reads(j)
    for i, m in enumerate(M):
        for op in pre[i]: op()
        if cfg.pairwait and i % 2 == 0 and i + 1 < N:
            P._need(R("a", RING + 4 * ((i + 1) % 8), 4))
        P.mfma(m["d"], ("a", RING + 4 * (i % 8)), m["b"], m["c"])
        if i + cfg.PD < N: reads(i + cfg.PD)
        for op in fill[i]: op()

def red_setup(P, cfg):
    S, V = P.salu, P.valu
    S(f"s_mul_i32 s3, s{sGrp}, {PART*16}")
    mk_srd(P, SRD_G, sWs, "s3", PART * 16)
    mk_srd(P, SRD_OUT, sOut, None, 8 * 96 * 896 * 2)
    V("v_lshrrev_b32 v41, 4, v0", ["v41"], ["v0"])
    V(f"v_mul_u32_u24 v40, {PART}, v41", ["v40"], ["v41"])
    V("v_and_b32 v42, 15, v0", ["v42"], ["v0"])
    V("v_lshl_add_u32 v40, v42, 4, v40", ["v40"], ["v42", "v40"])
    V("v_bfe_u32 v44, v0, 1, 2", ["v44"], ["v0"])
    V("v_mul_u32_u24 v43, 1792, v44", ["v43"], ["v44"])
    V("v_bfe_u32 v45, v0, 3, 1", ["v45"], ["v0"])
    V("v_lshl_add_u32 v43, v45, 5, v43", ["v43"], ["v45", "v43"])
    V("v_and_b32 v46, 1, v0", ["v46"], ["v0"])
    V("v_lshl_add_u32 v43, v46, 4, v43", ["v43"], ["v46", "v43"])
    V("v_lshl_add_u32 v43, v41, 3, v43", ["v43"], ["v41", "v43"])
    V("v_lshlrev_b32 v46, 4, v46", ["v46"], ["v46"])
    V("v_mov_b32 v47, 0x3f80", ["v47"])
    V("v_lshlrev_b32 v46, v46, v47", ["v46"], ["v46", "v47"])
    V("v_bfe_u32 v47, v0, 1, 3", ["v47"], ["v0"])
    for x in range(4):
        V(f"v_cmp_eq_u32 vcc, {x}, v47", ["vcc"], ["v47"])
        V(f"v_cndmask_b32 v{48+x}, 0, v46, vcc", [f"v{48+x}"], ["v46", "vcc"])
    V("v_lshlrev_b32 v52, 7, v42", ["v52"], ["v42"])
    S(f"s_mul_i32 s{sT3}, s{sB}, {96*1792}"); S(f"s_mul_i32 s3, s{sWhich}, 896"); S(f"s_add_u32 s{sT3}, s{sT3}, s3")
    for i in range(3):
        S(f"s_mul_i32 s3, s{sH}, 3"); S(f"s_add_u32 s3, s3, {i}")
        S(f"s_and_b32 s{90+i}, s3, 1"); S(f"s_lshl_b32 s{90+i}, s{90+i}, 6")
        S(f"s_lshr_b32 s3, s3, 1"); S(f"s_mul_i32 s3, s3, 7168")
        S(f"s_add_u32 s{90+i}, s{90+i}, s3"); S(f"s_add_u32 s{90+i}, s{90+i}, s{sT3}")
    S(f"s_mul_i32 s{sOffW}, s{sH}, 768")

def flag_read(P, k):
    P.raw(f"buffer_load_dword v55, v52, {srd(SRD_F)}, 0 offen sc1", "vmem")

def reduce4(P, cfg):
    S, V = P.salu, P.valu
    def col(n, dst):
        S(f"s_add_u32 s{dst}, s{sRotO}, {n}"); S(f"s_sub_u32 s3, s{dst}, 7"); S(f"s_cselect_b32 s{dst}, s{dst}, s3")
    lo = 0; rr = 0
    for k, c in enumerate(cfg.ck):
        steps = list(range(lo, c + 1)); lo = c + 1
        assert len(steps) <= 4
        if cfg.own:
            P.lab(f"L_own{k}")
            P.raw(f"ds_read_b32 v55, v2 offset:{1024+4*k}", "other"); P.raw("s_waitcnt lgkmcnt(0)", "wait")
            V(f"v_cmp_gt_u32 vcc, 3, v55", ["vcc"], ["v55"])
            S(f"s_cbranch_vccnz L_own{k}")
        P.lab(f"L_fl{k}")
        flag_read(P, k); P.raw("s_waitcnt vmcnt(0)", "wait")
        V(f"v_cmp_ge_u32 vcc, {k}, v55", ["vcc"], ["v55"])
        S(f"s_cbranch_vccz L_flok{k}")
        if cfg.pollgap:
            S(f"s_mov_b32 s3, {cfg.pollgap}")
            P.lab(f"L_fg{k}")
            P.raw("s_nop 15", "other"); S("s_sub_u32 s3, s3, 1"); S("s_cmp_lg_u32 s3, 0"); S(f"s_cbranch_scc1 L_fg{k}")
        S(f"s_branch L_fl{k}")
        P.lab(f"L_flok{k}")
        if not cfg.lst: stamp(P, cfg, 5 if k == 0 else 6)
        regs = []
        for n in steps:
            col(n, sT1)
            S(f"s_mul_i32 s{sOff}, s{sT1}, 12288"); S(f"s_add_u32 s{sOff}, s{sOff}, s{sOffW}")
            for g in range(4):
                for i in range(3):
                    r = 64 + 4 * (rr % 48); rr += 1
                    P.raw(f"buffer_load_dwordx4 v[{r}:{r+3}], v40, {srd(SRD_G)}, s{sOff} offen offset:{256*i} sc1", "vmem")
                    regs.append(r)
                if g < 3: S(f"s_add_u32 s{sOff}, s{sOff}, {4*PART}")
        behind = 0
        nst = 0
        for si, n in enumerate(steps):
            ab = 8 + 12 * (si & 1)
            for g in range(4):
                for i in range(3):
                    x = 12 * si + 3 * g + i
                    r = regs[x]; acc = ab + 4 * i
                    P.raw(f"s_waitcnt vmcnt({len(regs) - 1 - x + behind + nst})", "wait")
                    P.raw(f"v_mfma_f32_16x16x32_bf16 v[{acc}:{acc+3}], v[48:51], v[{r}:{r+3}], {'0' if g == 0 else f'v[{acc}:{acc+3}]'}", "other")
            col(n, sT1)
            S(f"s_lshl_b32 s{sT1}, s{sT1}, 7")
            P.raw("s_nop 4", "other")
            S("s_mov_b32 exec_hi, 0")
            for i in range(3):
                acc = ab + 4 * i; d = 56 + 2 * i
                if i == 2: P.raw("s_nop 1", "other")
                P.raw(f"v_cvt_pk_bf16_f32 v{d}, v{acc}, v{acc+1}", "other")
                P.raw(f"v_cvt_pk_bf16_f32 v{d+1}, v{acc+2}, v{acc+3}", "other")
                S(f"s_add_u32 s3, s{90+i}, s{sT1}")
                P.raw(f"buffer_store_dwordx2 v[{d}:{d+1}], v43, {srd(SRD_OUT)}, s3 offen", "vmem")
                nst += 1
            S("s_mov_b32 exec_hi, -1")

def write_stamps(P, cfg):
    if not cfg.stamps: return
    S, V = P.salu, P.valu
    P.raw("s_waitcnt vmcnt(0)", "wait")
    stamp(P, cfg, 7)
    P.raw("s_waitcnt lgkmcnt(0)", "wait")
    S(f"s_cmp_eq_u32 s{sWave}, 1"); S("s_cbranch_scc1 L_end")
    S(f"s_cmp_eq_u32 s{sWave}, 2"); S("s_cbranch_scc1 L_end")
    S(f"s_add_u32 s{sWs}, s{sWs}, 0x8000000"); S(f"s_addc_u32 s{sWs+1}, s{sWs+1}, 0")
    S(f"s_lshl_b32 s3, s2, 7"); S(f"s_and_b32 s{sT1}, s{sWave}, 1"); S(f"s_lshl_b32 s{sT1}, s{sT1}, 6"); S(f"s_add_u32 s3, s3, s{sT1}")
    V("v_mov_b32 v6, s3", ["v6"])
    for r in range(16): V(f"v_mov_b32 v{8+r}, s{sStamp+r}", [f"v{8+r}"])
    for k in range(4):
        P.raw(f"global_store_dwordx4 v6, v[{8+4*k}:{11+4*k}], s[{sWs}:{sWs+1}] offset:{16*k}", "vmem")

def gen(cfg, verbose=False):
    corder = cons_order(cfg)
    ci = {it: i for i, it in enumerate(corder)}
    order = issue_order(cfg)
    assert sorted(order) == sorted(corder)
    loc, need = alloc(order, ci, cfg.nxb)
    if verbose:
        print(" ".join(f"{lname(it)}@{loc[(it,'m')]//UNIT}<{lname(corder[need[it]]) if need[it]>=0 else '-'}" for it in order))
    lastrel = max(need.values())
    assert lastrel + 1 <= ci[Oi(cfg.nin, 6)]
    P = Prog()
    prologue(P, cfg)
    def bd():
        red_setup(P, cfg); return 0
    endidx = loader(P, cfg, order, loc, need, bd)
    if not cfg.nored: reduce4(P, cfg)
    P.salu("s_branch L_fin")
    P.lab("L_cons")
    consumer(P, cfg, corder, loc, endidx, lastrel)
    P.lab("L_fin")
    write_stamps(P, cfg)
    P.lab("L_end")
    P.raw("s_endpgm", "salu")
    P.finalize()
    body = P.text()
    for Q in P.tail_blocks:
        Q.finalize(); body += "\n" + Q.text()
    hdr = [f"; fused attention blocks A|B: one workgroup per (block, batch, head); waves 0-2 compute, wave 3 streams",
           "; @launch grid=(256,1,1) block=(256,1,1) lds=163840",
           '.amdgcn_target "amdgcn-amd-amdhsa--gfx950"', ".text", f".globl {NAME}_kernel", ".p2align 8",
           f".type {NAME}_kernel,@function", f"{NAME}_kernel:"]
    ftr = ["  s_endpgm", "L_codeend:", '.section .rodata,"a"', ".p2align 6", f".amdhsa_kernel {NAME}_kernel",
           "  .amdhsa_next_free_vgpr 512", "  .amdhsa_next_free_sgpr 101", "  .amdhsa_accum_offset 256",
           "  .amdhsa_group_segment_fixed_size 0", "  .amdhsa_kernarg_size 104", "  .amdhsa_user_sgpr_count 2",
           "  .amdhsa_user_sgpr_kernarg_segment_ptr 1", "  .amdhsa_system_sgpr_workgroup_id_x 1", ".end_amdhsa_kernel"]
    return "\n".join(hdr) + "\n" + body + "\n" + "\n".join(ftr) + "\n", P

if __name__ == "__main__":
    out = sys.argv[1]
    kw = {}
    for a in sys.argv[2:]:
        k, v = a.split("=", 1)
        kw[k] = eval(v)
    txt, P = gen(Cfg(**kw), verbose=True)
    open(out, "w").write(txt)
    print(out, len(txt), "bytes", dict(P.stats()))
```

```python
import sys, math, struct
from asmlib import Prog, R, F
NAME = "concat_heads__mha_block_cached__gqa_block_cached__near_ridge"
UNIT = 4096
NU = 39
FLAG = NU * UNIT
PART = 86016

def f32bits(x):
    return struct.unpack("<I", struct.pack("<f", x))[0]

class Cfg:
    PD = 6
    D_kv = 48
    D_w = 32
    kfirst = 2
    kmix = ()
    o3early = 0
    stamps = False
    touch = True
    wtouch = True
    nxb = 2
    wpol = " nt"
    xpol = ""
    opol = ""
    tpol = " nt"
    otouch_at = 8
    slowstep = 8
    order = None
    nosync = False
    noload = False
    cyc = False
    ncode = 1
    pairwait = True
    early = False
    s1at = 'first'
    pollgap = 0
    rot2 = True
    plines = 1
    toreg = False
    earlybar = False
    cst = None
    lst = None
    def __init__(self, **kw):
        for k, v in kw.items():
            assert hasattr(Cfg, k), k
            setattr(self, k, v)

sX, sK, sV, sWq, sWo, sWs, sOut, sDbg = 4, 6, 8, 10, 12, 14, 16, 18
SRD_K, SRD_V, SRD_W, SRD_X, SRD_O, SRD_P, SRD_G, SRD_OUT = 24, 28, 32, 36, 40, 44, 48, 52
sB, sWhich, sH, sGrp, sWave = 56, 57, 58, 59, 60
sFlag, sPub, sOff, sRot, sOffW, sOffX, sC, sNC, sT0 = 61, 62, 63, 64, 65, 66, 67, 68, 69
sStamp = 70
sT1, sT2, sT3 = 86, 87, 88
sNeed, sCnt, sRet = 89, 93, 94
sPc = 22

def srd(n): return f"s[{n}:{n+3}]"

Qi = lambda i: ('Q', i)
Ki = lambda t: ('K', t)
Vi = lambda q, j: ('V', q, j)
Oi = lambda q, n: ('O', q, n)

def cons_order():
    o = [Qi(i) for i in range(14)] + [Ki(t) for t in range(16)]
    o += [Vi(0, j) for j in range(4)]
    for q in range(1, 4):
        o += [Vi(q, 0)] + [Oi(q - 1, n) for n in range(7)] + [Vi(q, j) for j in range(1, 4)]
    o += [Oi(3, n) for n in range(7)]
    return o

def issue_order(cfg):
    if cfg.order: return list(cfg.order)
    o = [Ki(t) for t in range(cfg.kfirst)]
    nk = cfg.kfirst
    mix = dict(cfg.kmix)
    for i in range(14):
        o.append(Qi(i))
        for _ in range(mix.get(i, 0)):
            o.append(Ki(nk)); nk += 1
    o += [Ki(t) for t in range(nk, 16)]
    rest = cons_order()[30:]
    if cfg.o3early:
        e = [Oi(3, n) for n in range(cfg.o3early)]
        rest = [x for x in rest if x not in e]
        p = rest.index(Vi(3, 1))
        rest = rest[:p] + e + rest[p:]
    return o + rest

def parts(it):
    if it[0] == 'Q': return ([('x', 3)] if it[1] % 2 == 0 else []) + [('m', 4)]
    if it[0] == 'O': return [('m', 2)]
    if it[0] in 'TP': return [('m', 1)]
    return [('m', 4)]

def alloc(order, ci, nxb):
    occ = [-1] * NU
    loc, need = {}, {}
    issued = set(); done = set()
    for it in order:
        p = -1
        for nm, n in parts(it):
            best = None
            for s in (range(NU - n + 1) if nm != 'x' else [NU - 3 * (k + 1) for k in range(nxb)]):
                if nm != 'x' and Qi(12) not in done and s + n > NU - 3 * nxb: continue
                seg = occ[s:s + n]
                cross = (s * UNIT) // 65536 != ((s + n) * UNIT - 1) // 65536
                key = (max(seg), cross, sum(max(seg) - x for x in seg), (s % 4 != 0) if n == 4 else (-s if nm == 'x' else s % 2), s)
                if best is None or key < best[0]: best = (key, s)
            s = best[1]
            p = max(p, max(occ[s:s + n]))
            for u in range(s, s + n): occ[u] = ci[it]
            loc[(it, nm)] = s * UNIT
        need[it] = p
        assert all(j in issued for j in range(p + 1)), (it, p)
        issued.add(ci[it]); done.add(it)
    return loc, need

def stamp(P, cfg, i):
    if cfg.stamps:
        P.raw(f"{'s_memtime' if cfg.cyc else 's_memrealtime'} s[{sStamp+2*i}:{sStamp+2*i+1}]", "salu")

def prologue(P, cfg):
    S = P.salu
    S("s_cmp_ge_u32 s2, 256"); S("s_cbranch_scc1 L_end")
    stamp(P, cfg, 0)
    S(f"s_bfe_u32 s{sWhich}, s2, 0x10002")
    S(f"s_mul_i32 s3, s{sWhich}, 40")
    S("s_add_u32 s20, s0, s3"); S("s_addc_u32 s21, s1, 0")
    S(f"s_load_dwordx8 s[4:11], s[20:21], 0")
    S(f"s_load_dwordx2 s[12:13], s[20:21], 32")
    S(f"s_load_dwordx2 s[14:15], s[0:1], 96")
    S(f"s_load_dwordx4 s[16:19], s[0:1], 80")
    P.valu("v_lshrrev_b32 v3, 6, v0", ["v3"], ["v0"])
    S(f"s_bfe_u32 s{sB}, s2, 0x30003")
    if cfg.ncode:
        S(f"s_getpc_b64 s[{sPc}:{sPc+1}]")
        P.lab("L_pc")
        S(f"s_lshl_b32 s3, s{sB}, 13")
        P.valu("v_lshl_add_u32 v6, v0, 5, s3", ["v6"], ["v0"])
        for i in range(cfg.ncode):
            if i: P.valu("v_add_u32 v6, 0x10000, v6", ["v6"], ["v6"])
            P.valu("v_min_u32 v7, L_codeend-L_pc-4, v6", ["v7"], ["v6"])
            P.vmem(f"global_load_dword a{72+i}, v7, s[{sPc}:{sPc+1}]", [f"a{72+i}"], ["v7"])
    S(f"s_and_b32 s{sH}, s2, 3"); S(f"s_lshl_b32 s{sH}, s{sH}, 2")
    S(f"s_lshr_b32 s3, s2, 6"); S(f"s_add_u32 s{sH}, s{sH}, s3")
    P.valu(f"v_readfirstlane_b32 s{sWave}, v3", [f"s{sWave}"], ["v3"])
    P.valu("v_and_b32 v0, 63, v0", ["v0"], ["v0"])
    S(f"s_lshl_b32 s{sGrp}, s{sWhich}, 3"); S(f"s_add_u32 s{sGrp}, s{sGrp}, s{sB}")
    if cfg.rot2:
        S(f"s_lshl_b32 s3, s3, 1"); S(f"s_add_u32 s{sRot}, s{sB}, s3")
        S(f"s_sub_u32 s3, s{sRot}, 7"); S(f"s_cselect_b32 s{sRot}, s{sRot}, s3")
    else:
        S(f"s_cmp_eq_u32 s{sB}, 7"); S(f"s_cselect_b32 s{sRot}, 0, s{sB}")
    P.valu("v_lshlrev_b32 v2, 4, v0", ["v2"], ["v0"])
    P.valu(f"v_add_u32 v2, {FLAG}, v2", ["v2"], ["v2"])
    S(f"s_lshl_b32 s3, s{sWave}, 2")
    P.valu(f"v_add_u32 v1, s3, v2", ["v1"], ["v2"])
    P.valu(f"v_mov_b32 v2, {FLAG}", ["v2"])
    P.valu("v_mov_b32 v4, 0", ["v4"])
    P.ds("ds_write_b32 v1, v4", [], ["v1", "v4"])
    S(f"s_lshl_b32 s3, s{sB}, 4"); S(f"s_add_u32 s3, s3, s{sH}"); S(f"s_lshl_b32 s{sT0}, s3, 18")
    S(f"s_cmp_lg_u32 s{sWave}, 3"); S("s_cbranch_scc1 L_cons")

def mk_srd(P, dst, base, off, size):
    S = P.salu
    if off is None:
        S(f"s_mov_b32 s{dst}, s{base}"); S(f"s_mov_b32 s{dst+1}, s{base+1}")
    else:
        S(f"s_add_u32 s{dst}, s{base}, {off}"); S(f"s_addc_u32 s{dst+1}, s{base+1}, 0")
    S(f"s_mov_b32 s{dst+2}, {size}"); S(f"s_mov_b32 s{dst+3}, 0x20000")
def srd_w(P):
    P.salu(f"s_lshl_b32 s3, s{sH}, 9"); mk_srd(P, SRD_W, sWq, "s3", 447 * 8192 + 512)
def srd_x(P):
    P.salu(f"s_mul_i32 s3, s{sB}, 86016"); mk_srd(P, SRD_X, sX, "s3", 86016)
def srd_o(P):
    P.salu(f"s_mul_i32 s3, s{sH}, {256*896}"); mk_srd(P, SRD_O, sWo, "s3", 256 * 896)

def lname(it): return "_".join(str(x) for x in it)

def loader(P, cfg, order, loc, need, endidx):
    S, V = P.salu, P.valu
    P.lab("L_loader")
    P.ds_q = []
    V("v_lshrrev_b32 v5, 5, v0", ["v5"], ["v0"])
    V("v_and_b32 v6, 31, v0", ["v6"], ["v0"])
    V("v_lshlrev_b32 v7, 9, v5", ["v7"], ["v5"])
    for t in range(8):
        V(f"v_add_u32 v3, {2*t}, v5", ["v3"], ["v5"])
        V(f"v_xor_b32 v3, v3, v6", ["v3"], ["v3", "v6"])
        V(f"v_lshl_add_u32 v{8+t}, v3, 4, v7", [f"v{8+t}"], ["v3", "v7"])
    P.raw("s_waitcnt lgkmcnt(0)", "wait")
    mk_srd(P, SRD_K, sK, f"s{sT0}", 262144)
    if cfg.early: stamp(P, cfg, 1)
    st = dict(c=0, done=0, pub=0, barrier=False, pre=False)
    ends = []
    def crossed(done):
        e = [e for it, e in ends if e <= done]
        return max(e) if e else 0
    def publish(n):
        V(f"v_mov_b32 v4, {n}", ["v4"])
        P.ds("ds_max_i32 v1, v4", [], ["v1", "v4"])
    def need_barrier():
        if not st["barrier"]:
            P.lgkm0(); P.raw("s_barrier", "salu"); st["barrier"] = True
    def pollread(Q):
        Q.ds("ds_read_b96 v[32:34], v2", ["v32", "v33", "v34"], ["v2"])
    def polluse(Q):
        Q.valu("v_min3_u32 v32, v32, v33, v34", ["v32"], ["v32", "v33", "v34"])
        Q.valu(f"v_readfirstlane_b32 s{sFlag}, v32", [f"s{sFlag}"], ["v32"])
    Q = Prog(); Q.lab("L_slow")
    def qpoll():
        pollread(Q); polluse(Q)
        Q.salu(f"s_cmp_gt_u32 s{sFlag}, s{sNeed}"); Q.salu("s_cbranch_scc1 L_slowret")
    qpoll()
    for n in range(56 - cfg.slowstep, -1, -cfg.slowstep):
        Q.raw(f"s_waitcnt vmcnt({n})", "wait")
        Q.salu(f"s_sub_u32 s3, s{sCnt}, {n}")
        Q.valu("v_mov_b32 v4, s3", ["v4"]); Q.ds("ds_max_i32 v1, v4", [], ["v1", "v4"])
        if n == 0: Q.lab("L_slowx")
        qpoll()
    Q.salu("s_branch L_slowx")
    Q.lab("L_slowret")
    Q.salu(f"s_setpc_b64 s[{sRet}:{sRet+1}]")
    P.tail_blocks.append(Q)
    def late_setup():
        mk_srd(P, SRD_V, sV, f"s{sT0}", 262144)
        srd_w(P); srd_x(P); srd_o(P)
        for p in range(2):
            V(f"v_add_u32 v3, {2*p}, v5", ["v3"], ["v5"])
            V("v_lshlrev_b32 v3, 2, v3", ["v3"], ["v3"])
            V("v_xor_b32 v3, v3, v6", ["v3"], ["v3", "v6"])
            V("v_lshlrev_b32 v18, 13, v5", ["v18"], ["v5"])
            V(f"v_lshl_add_u32 v3, v3, 4, v18", ["v3"], ["v3", "v18"])
            V(f"v_add_u32 v{20+p}, {p*15360}, v3", [f"v{20+p}"], ["v3"])
            V(f"v_add_u32 v{22+p}, {(p+2)*15360}, v3", [f"v{22+p}"], ["v3"])
        V("v_lshrrev_b32 v36, 3, v0", ["v36"], ["v0"])
        V("v_mul_u32_u24 v37, 896, v36", ["v37"], ["v36"])
        V("v_and_b32 v38, 7, v0", ["v38"], ["v0"])
        V("v_lshrrev_b32 v35, 4, v0", ["v35"], ["v0"])
        for p in range(2):
            V(f"v_add_u32 v3, {4*p}, v35", ["v3"], ["v35"])
            V("v_xor_b32 v3, v3, v38", ["v3"], ["v3", "v38"])
            V("v_lshl_add_u32 v3, v3, 4, v37", ["v3"], ["v3", "v37"])
            V(f"v_add_u32 v{24+p}, {p*6144}, v3", [f"v{24+p}"], ["v3"])
            V(f"v_add_u32 v{26+p}, {(p+2)*6144}, v3", [f"v{26+p}"], ["v3"])
        V("v_and_b32 v3, 1, v35", ["v3"], ["v35"])
        V("v_lshlrev_b32 v3, 2, v3", ["v3"], ["v3"])
        V("v_xor_b32 v3, v3, v38", ["v3"], ["v3", "v38"])
        V("v_lshl_add_u32 v28, v3, 4, v37", ["v28"], ["v3", "v37"])
        V("v_lshlrev_b32 v36, 9, v36", ["v36"], ["v36"])
        V("v_lshl_add_u32 v16, v3, 4, v36", ["v16"], ["v3", "v36"])
        for j in range(1, 4):
            V(f"v_add_u32 v{28+j}, {j*6144}, v28", [f"v{28+j}"], ["v28"])
            V(f"v_add_u32 v{16+j}, {j*3072}, v16", [f"v{16+j}"], ["v16"])
        S(f"s_mov_b32 s{sFlag}, 0")
        S(f"s_mov_b32 s{sT1}, s{sRot}")
        S(f"s_mov_b32 s{sT2}, s{sRot}")
    did_setup = False
    def group(lds, srdn, soff_setup, vregs, pol):
        S(f"s_mov_b32 m0, {lds}", ["m0"])
        soff_setup()
        for j, vr in enumerate(vregs):
            if cfg.toreg: P.vmem(f"buffer_load_dwordx4 a[{(st['c']%60)*4}:{(st['c']%60)*4+3}], v{vr}, {srd(srdn)}, s{sOff} offen offset:{j*1024}{pol}", [], [f"v{vr}"])
            elif not cfg.noload: P.vmem(f"buffer_load_dwordx4 v{vr}, {srd(srdn)}, s{sOff} offen offset:{j*1024}{pol} lds", [], [f"v{vr}"], dma=True)
            st["c"] += 1
    def after_group(D):
        if st["c"] - st["done"] > D:
            st["done"] = st["c"] - D
            P.raw(f"s_waitcnt vmcnt({D})", "wait")
            n = crossed(st["done"])
            if n > st["pub"]:
                need_barrier(); publish(st["done"]); st["pub"] = n
    known = {"k": -1}
    def eff_need(idx):
        p = need[order[idx]]
        if cfg.nosync or p <= known["k"]: return -1
        return p
    def prefetch_flags(idx):
        if idx + 1 < len(order) and eff_need(idx + 1) >= 0:
            need_barrier(); pollread(P); st["pre"] = True
    for idx, it in enumerate(order):
        if not did_setup and (it[0] != 'K' or idx >= 2):
            late_setup(); did_setup = True
        p = eff_need(idx)
        if p >= 0:
            assert st["pre"]; st["pre"] = False
            polluse(P)
            S(f"s_cmp_gt_u32 s{sFlag}, {p}"); S(f"s_cbranch_scc1 L_lb{lname(it)}")
            S(f"s_mov_b32 s{sNeed}, {p}"); S(f"s_mov_b32 s{sCnt}, {st['c']}")
            S(f"s_call_b64 s[{sRet}:{sRet+1}], L_slow")
            P.lab(f"L_lb{lname(it)}")
            P.ds_q = []
            known["k"] = p
        base = loc[(it, 'm')]
        def run(ng, srdn, so, vr, pol, D):
            for g in range(ng):
                if g == ng - 1: prefetch_flags(idx)
                group(base + g * 4096, srdn, lambda: so(g), vr(g), pol)
                if g == ng - 1: ends.append((it, st["c"]))
                after_group(D)
        if it[0] == 'T':
            V("v_lshlrev_b32 v3, 7, v0", ["v3"], ["v0"])
            S(f"s_mul_i32 s{sOff}, s{sB}, {32*896}")
            for i in range(4):
                P.vmem(f"buffer_load_dword a{64+i}, v3, {srd(SRD_O)}, s{sOff} offen{cfg.tpol}", [f"a{64+i}"], ["v3"])
                S(f"s_add_u32 s{sOff}, s{sOff}, 8192")
                st["c"] += 1
            ends.append((it, st["c"]))
            after_group(cfg.D_kv)
        elif it[0] == 'P':
            V(f"v_and_b32 v3, {cfg.plines-1}, v0", ["v3"], ["v0"])
            V(f"v_mul_u32_u24 v3, {229376//cfg.plines}, v3", ["v3"], ["v3"])
            for i, sr in enumerate((SRD_K, SRD_V, SRD_O, SRD_V)):
                P.vmem(f"buffer_load_dword a{68+i}, v3, {srd(sr)}, 0 offen nt", [f"a{68+i}"], ["v3"])
                st["c"] += 1
            ends.append((it, st["c"]))
            after_group(cfg.D_kv)
        elif it[0] == 'Q':
            i = it[1]; D = cfg.D_w
            if i % 2 == 0:
                S(f"s_lshl_b32 s{sOffW}, s{sT1}, 19"); S(f"s_lshl_b32 s{sOffX}, s{sT1}, 7")
                S(f"s_add_u32 s{sT1}, s{sT1}, 1"); S(f"s_cmp_eq_u32 s{sT1}, 7"); S(f"s_cselect_b32 s{sT1}, 0, s{sT1}")
                for g in range(3):
                    group(loc[(it, 'x')] + g * 4096, SRD_X, lambda: S(f"s_add_u32 s{sOff}, s{sOffX}, {g*28672}"), [24, 25, 26, 27], cfg.xpol)
                    after_group(D)
            run(4, SRD_W, lambda g: S(f"s_add_u32 s{sOff}, s{sOffW}, {(i&1)*262144 + g*65536}"), lambda g: [20, 21, 22, 23], cfg.wpol, D)
        elif it[0] == 'K':
            t = it[1]
            run(4, SRD_K, lambda g: S(f"s_mov_b32 s{sOff}, {t*16384 + g*4096}"), lambda g: [8 + 4 * (g & 1) + j for j in range(4)], " nt", cfg.D_kv)
        elif it[0] == 'U':
            t = it[1]
            run(4, SRD_V, lambda g: S(f"s_mov_b32 s{sOff}, {t*16384 + g*4096}"), lambda g: [8 + 4 * (g & 1) + j for j in range(4)], " nt", cfg.D_kv)
            if t == 15: stamp(P, cfg, 3)
        elif it[0] == 'V':
            q, j = it[1], it[2]
            run(4, SRD_V, lambda g: S(f"s_mov_b32 s{sOff}, {(128*j + 32*g)*512 + q*128}"), lambda g: [16, 17, 18, 19], " nt", cfg.D_kv)
        else:
            q = it[1]
            D = cfg.D_w if all(x[0] == 'O' for x in order[idx:]) else cfg.D_kv
            S(f"s_lshl_b32 s{sOffX}, s{sT2}, 7")
            S(f"s_add_u32 s{sT2}, s{sT2}, 1"); S(f"s_cmp_eq_u32 s{sT2}, 7"); S(f"s_cselect_b32 s{sT2}, 0, s{sT2}")
            run(2, SRD_O, lambda g: S(f"s_add_u32 s{sOff}, s{sOffX}, {(64*q + 32*g)*896}"), lambda g: [28, 29, 30, 31], cfg.opol, D)
        if cfg.earlybar: need_barrier()
        if cfg.lst:
            if it in cfg.lst: stamp(P, cfg, 1 + cfg.lst.index(it))
        elif cfg.early:
            if it == Qi(0): stamp(P, cfg, 2)
            if it == Qi(3): stamp(P, cfg, 3)
        else:
            if it == Qi(13): stamp(P, cfg, 1)
            if it == Ki(15): stamp(P, cfg, 2)
            if it == Vi(3, 3): stamp(P, cfg, 3)
    if not cfg.lst: stamp(P, cfg, 4)
    for it, e in ends:
        if e > st["pub"]:
            if e > st["done"]:
                st["done"] = e
                P.raw(f"s_waitcnt vmcnt({st['c']-e})", "wait")
            publish(st["done"]); st["pub"] = e
    assert st["pub"] == st["c"]
    assert dict(ends) == endidx
    if not cfg.lst: stamp(P, cfg, 5)

class AddrReg:
    def __init__(self, reg): self.reg = reg; self.base = 0
RING = 224
VS = 32
VQ = 64
VP = 128
HIST = 32
def consumer(P, cfg, corder, loc, endidx, lastrel):
    S, V = P.salu, P.valu
    P.raw("s_waitcnt lgkmcnt(0)", "wait"); P.ds_q = []
    srd_w(P); srd_x(P); srd_o(P)
    if cfg.touch:
        S(f"s_cmp_eq_u32 s{sWave}, 1"); S("s_cbranch_scc1 L_t1")
        S(f"s_cmp_eq_u32 s{sWave}, 2"); S("s_cbranch_scc1 L_t2")
        V("v_lshrrev_b32 v6, 2, v0", ["v6"], ["v0"]); V("v_lshlrev_b32 v6, 13, v6", ["v6"], ["v6"])
        V("v_and_b32 v7, 3, v0", ["v7"], ["v0"]); V("v_lshl_add_u32 v6, v7, 7, v6", ["v6"], ["v6", "v7"])
        S(f"s_mul_i32 s{sOff}, s{sB}, {56*8192}")
        for i in range(4 if cfg.wtouch else 0):
            P.vmem(f"buffer_load_dword a{64+i}, v6, {srd(SRD_W)}, s{sOff} offen{cfg.tpol}", [f"a{64+i}"], ["v6"])
            S(f"s_add_u32 s{sOff}, s{sOff}, {16*8192}")
        S("s_branch L_t2")
        P.lab("L_t1")
        V("v_lshlrev_b32 v6, 7, v0", ["v6"], ["v0"])
        S(f"s_and_b32 s{sOff}, s{sH}, 3"); S(f"s_mul_i32 s{sOff}, s{sOff}, {168*128}")
        for i in range(3):
            P.vmem(f"buffer_load_dword a{64+i}, v6, {srd(SRD_X)}, s{sOff} offen{cfg.tpol}", [f"a{64+i}"], ["v6"])
            S(f"s_add_u32 s{sOff}, s{sOff}, 8192")
        P.lab("L_t2")
    V("v_and_b32 v36, 31, v0", ["v36"], ["v0"])
    V("v_lshrrev_b32 v37, 5, v0", ["v37"], ["v0"])
    V("v_bfe_u32 v38, v0, 4, 1", ["v38"], ["v0"])
    V("v_bfe_u32 v39, v0, 2, 2", ["v39"], ["v0"])
    V("v_and_b32 v40, 3, v0", ["v40"], ["v0"])
    V("v_bfe_u32 v41, v0, 1, 1", ["v41"], ["v0"])
    V("v_and_b32 v42, 1, v0", ["v42"], ["v0"])
    V("v_lshl_add_u32 v41, v42, 1, v41", ["v41"], ["v41", "v42"])
    V("v_lshl_add_u32 v45, v37, 3, v39", ["v45"], ["v37", "v39"])
    V("v_lshlrev_b32 v45, 9, v45", ["v45"], ["v45"])
    V("v_lshl_add_u32 v45, v38, 5, v45", ["v45"], ["v38", "v45"])
    V("v_lshl_add_u32 v45, v41, 3, v45", ["v45"], ["v41", "v45"])
    for d3 in range(4):
        V(f"v_xor_b32 v44, {d3}, v39", ["v44"], ["v39"])
        V(f"v_lshl_add_u32 v{20+d3}, v44, 6, v45", [f"v{20+d3}"], ["v44", "v45"])
    S(f"s_lshl_b32 s3, s{sWave}, 12")
    V("v_lshlrev_b32 v43, 7, v36", ["v43"], ["v36"])
    V("v_add_u32 v43, s3, v43", ["v43"], ["v43"])
    V("v_bfe_u32 v42, v36, 1, 3", ["v42"], ["v36"])
    for s in range(4):
        V(f"v_add_u32 v44, {2*s}, v37", ["v44"], ["v37"])
        V("v_xor_b32 v44, v44, v42", ["v44"], ["v44", "v42"])
        V(f"v_lshl_add_u32 v{24+s}, v44, 4, v43", [f"v{24+s}"], ["v44", "v43"])
    V("v_and_b32 v42, 15, v36", ["v42"], ["v36"])
    V("v_lshlrev_b32 v43, 9, v36", ["v43"], ["v36"])
    for s7 in range(8):
        V(f"v_add_u32 v44, {2*s7}, v37", ["v44"], ["v37"])
        V("v_xor_b32 v44, v44, v42", ["v44"], ["v44", "v42"])
        V(f"v_lshl_add_u32 v{8+s7}, v44, 4, v43", [f"v{8+s7}"], ["v44", "v43"])
    V("v_lshl_add_u32 v42, v37, 2, v39", ["v42"], ["v37", "v39"])
    V("v_lshlrev_b32 v43, 7, v42", ["v43"], ["v42"])
    V("v_lshl_add_u32 v43, v38, 5, v43", ["v43"], ["v38", "v43"])
    V("v_lshrrev_b32 v44, 1, v39", ["v44"], ["v39"])
    V("v_lshl_add_u32 v43, v44, 6, v43", ["v43"], ["v44", "v43"])
    V("v_lshl_add_u32 v16, v40, 3, v43", ["v16"], ["v40", "v43"])
    V("v_xor_b32 v17, 64, v16", ["v17"], ["v16"])
    V("v_lshl_add_u32 v28, v41, 3, v43", ["v28"], ["v41", "v43"])
    V("v_xor_b32 v29, 64, v28", ["v29"], ["v28"])
    V("v_lshrrev_b32 v42, 3, v36", ["v42"], ["v36"])
    V("v_lshlrev_b32 v5, 10, v42", ["v5"], ["v42"])
    V("v_lshl_add_u32 v5, v37, 7, v5", ["v5"], ["v37", "v5"])
    V("v_and_b32 v42, 7, v36", ["v42"], ["v36"])
    V("v_lshl_add_u32 v5, v42, 4, v5", ["v5"], ["v42", "v5"])
    V("v_mov_b32 v4, 1", ["v4"])
    c = math.log2(math.e) / 16.0
    S(f"s_mov_b32 s{sC}, {hex(f32bits(c))}"); S(f"s_mov_b32 s{sNC}, {hex(f32bits(-c))}")
    S(f"s_lshl_b32 s3, s{sGrp}, 4"); S(f"s_add_u32 s3, s3, s{sH}"); S(f"s_mul_i32 s3, s3, {PART}")
    mk_srd(P, SRD_P, sWs, "s3", PART)
    S(f"s_mul_i32 s{sOffW}, s{sWave}, 28672")
    P.raw("s_barrier", "salu")

    regs = {r: AddrReg(r) for r in range(8, 30)}
    def addr(reg, off):
        a = regs[reg]
        if not (0 <= off - a.base <= 65535 - 16):
            nb = (off // 65536) * 65536
            d = nb - a.base
            if d > 0: V(f"v_add_u32 v{reg}, {d}, v{reg}", [f"v{reg}"], [f"v{reg}"])
            else: V(f"v_subrev_u32 v{reg}, {-d}, v{reg}", [f"v{reg}"], [f"v{reg}"])
            a.base = nb
        return off - a.base
    def rd128(dst, reg, off):
        o = addr(reg, off)
        P.ds(f"ds_read_b128 {F('a', dst, 4)}, v{reg} offset:{o}", R('a', dst, 4), [f"v{reg}"])
    def rdtr(dst, reg, off):
        o = addr(reg, off)
        P.ds(f"ds_read_b64_tr_b16 {F('a', dst, 2)}, v{reg} offset:{o}", R("a", dst, 2), [f"v{reg}"])

    M = []
    for it in corder:
        sb = loc[(it, 'm')]
        if it[0] == 'Q':
            i = it[1]
            seq = [(ks, dt) for ks in range(2) for dt in range(8)] if i < 13 else [(ks, dt) for dt in range(8) for ks in range(2)]
            for ks, dt in seq:
                def rd(rb, sb=sb, ks=ks, dt=dt):
                    for pp in range(2): rdtr(rb + 2 * pp, 20 + (dt & 3), sb + ks * 8192 + pp * 2048 + 256 * (dt >> 2))
                xb = 16 * ((i // 2) & 1) + 4 * (2 * (i & 1) + ks)
                d = ("v", VP + 16 * dt)
                M.append(dict(item=it, rd=rd, d=d, b=("a", xb), c=None if (i == 0 and ks == 0) else d))
        elif it[0] == 'K':
            t = it[1]
            for s in range(16):
                def rd(rb, sb=sb, s=s): rd128(rb, 8 + (s & 7), sb + 256 * (s >> 3))
                d = ("v", VS + 16 * (t & 1))
                M.append(dict(item=it, rd=rd, d=d, b=("v", VQ + 4 * s), c=None if s == 0 else d))
        elif it[0] == 'V':
            q, j = it[1], it[2]
            seq = [(ks, dt) for ks in range(8) for dt in range(2)] if it != Vi(3, 3) else [(ks, dt) for dt in range(2) for ks in range(8)]
            for ks, dt in seq:
                def rd(rb, sb=sb, ks=ks, dt=dt):
                    for pp in range(2): rdtr(rb + 2 * pp, 16 + dt, sb + ks * 2048 + pp * 1024)
                d = ("v", VQ + 32 * (q & 1) + 16 * dt)
                M.append(dict(item=it, rd=rd, d=d, b=("v", VP + 32 * j + 4 * ks), c=None if (j == 0 and ks == 0) else d))
        else:
            q, n = it[1], it[2]
            seq = [(kk, nt) for kk in range(4) for nt in range(2)] if (q < 3 or n == 0) else [(kk, nt) for nt in range(2) for kk in range(4)]
            for kk, nt in seq:
                def rd(rb, sb=sb, kk=kk, nt=nt):
                    for pp in range(2): rdtr(rb + 2 * pp, 28 + nt, sb + kk * 2048 + pp * 1024)
                d = ("a", 32 * n + 16 * nt)
                M.append(dict(item=it, rd=rd, d=d, b=("v", VS + 16 * (q & 1) + 4 * kk), c=None if (q == 0 and kk == 0) else d))
    N = len(M)
    assert N == 960
    first = {}
    for i, m in enumerate(M): first.setdefault(m["item"], i)
    fill = {i: [] for i in range(-1, N + 1)}
    pre = {i: [] for i in range(N)}
    def spread(ops, g0, g1):
        n = g1 - g0 + 1
        for j, op in enumerate(ops):
            fill[g0 + (j * n) // len(ops)].append(op)
    def vop(text, w, r): return lambda: V(text, w, r)
    def cvt(dst, a): return vop(f"v_cvt_pk_bf16_f32 v{dst}, v{a}, v{a+1}", [f"v{dst}"], [f"v{a}", f"v{a+1}"])
    def accrd(dst, a): return vop(f"v_accvgpr_read_b32 v{dst}, a{a}", [f"v{dst}"], [f"a{a}"])
    f13 = first[Qi(13)]
    for dt in range(8):
        spread([cvt(VQ + 8 * dt + j, VP + 16 * dt + 2 * j) for j in range(8)], f13 + 2 * dt + 4, f13 + 2 * dt + 5)
    def maxops(t):
        sb = VS + 16 * (t & 1)
        ops = []
        for j in range(8):
            a = sb + 2 * j
            if t == 0 and j == 0: ops.append(vop(f"v_max_f32 v6, v{a}, v{a+1}", ["v6"], [f"v{a}", f"v{a+1}"]))
            else: ops.append(vop(f"v_max3_f32 v6, v6, v{a}, v{a+1}", ["v6"], ["v6", f"v{a}", f"v{a+1}"]))
        if t == 15:
            ops.append(vop("v_mov_b32 v18, v6", ["v18"], ["v6"]))
            ops.append(vop("v_permlane32_swap_b32 v18, v6", ["v18", "v6"], ["v18", "v6"]))
            ops.append(vop("v_max_f32 v6, v18, v6", ["v6"], ["v18", "v6"]))
        nm, po = 30 + (t & 1), 30 + ((t + 1) & 1)
        ops.append(vop(f"v_mul_f32 v18, s{sNC}, v6", ["v18"], ["v6"]))
        ops.append(vop(f"v_floor_f32 v{nm}, v18", [f"v{nm}"], ["v18"]))
        return ops
    def resc(t):
        nm, po = 30 + (t & 1), 30 + ((t + 1) & 1)
        ops = []
        if t > 0:
            ops.append(vop(f"v_sub_f32 v18, v{nm}, v{po}", ["v18"], [f"v{nm}", f"v{po}"]))
            ops.append(vop("v_cvt_i32_f32 v18, v18", ["v18"], ["v18"]))
            ops.append(vop("v_ldexp_f32 v7, v7, v18", ["v7"], ["v7", "v18"]))
        if t < 15:
            ops.append(vop(f"v_accvgpr_write_b32 a{HIST+t}, v{nm}", [f"a{HIST+t}"], [f"v{nm}"]))
        return ops
    def pops(t):
        sb = VS + 16 * (t & 1); nm = 30 + (t & 1)
        ops = []
        for h in range(4):
            e = range(sb + 4 * h, sb + 4 * h + 4)
            for a in e: ops.append(vop(f"v_fma_f32 v{a}, v{a}, s{sC}, v{nm}", [f"v{a}"], [f"v{a}", f"v{nm}"]))
            for a in e: ops.append(lambda a=a: P.trans(f"v_exp_f32 v{a}, v{a}", [f"v{a}"], [f"v{a}"]))
            if h > 0: ops += post(t, h - 1)
        ops += post(t, 3)
        return ops
    def post(t, h):
        sb = VS + 16 * (t & 1)
        ops = []
        for j in (2 * h, 2 * h + 1):
            a = sb + 2 * j
            ops.append(cvt(VP + 8 * t + j, a))
            if t == 0 and j == 0:
                ops.append(vop(f"v_add_f32 v7, v{a}, v{a+1}", ["v7"], [f"v{a}", f"v{a+1}"]))
            else:
                ops.append(vop(f"v_add_f32 v7, v7, v{a}", ["v7"], ["v7", f"v{a}"]))
                ops.append(vop(f"v_add_f32 v7, v7, v{a+1}", ["v7"], ["v7", f"v{a+1}"]))
        return ops
    for t in range(15):
        f = first[Ki(t + 1)]
        spread(maxops(t) + resc(t) + pops(t), f + 2, f + 15)
    def corr(t):
        ops = [accrd(19, HIST + t),
               vop("v_sub_f32 v19, v19, v31", ["v19"], ["v19", "v31"]),
               vop("v_cvt_u32_f32 v19, v19", ["v19"], ["v19"]),
               vop("v_min_u32 v19, 0xff, v19", ["v19"], ["v19"]),
               vop("v_mul_u32_u24 v19, 0x800080, v19", ["v19"], ["v19"])]
        for j in range(8):
            a = VP + 8 * t + j
            ops.append(vop(f"v_pk_sub_u16 v{a}, v{a}, v19 clamp", [f"v{a}"], [f"v{a}", "v19"]))
        return ops
    fv0 = first[Vi(0, 0)]
    pre[fv0] += maxops(15) + corr(0)
    if not cfg.cst: pre[fv0].append(lambda: stamp(P, cfg, 3))
    last = resc(15) + pops(15)
    for t in range(1, 15):
        spread(corr(t), fv0 + 4 * (t - 1), fv0 + 4 * (t - 1) + 2)
    spread(last, fv0 + 1, fv0 + 54)
    fin = [vop("v_mov_b32 v18, v7", ["v18"], ["v7"]),
           vop("v_permlane32_swap_b32 v18, v7", ["v18", "v7"], ["v18", "v7"]),
           vop("v_add_f32 v7, v18, v7", ["v7"], ["v18", "v7"]),
           lambda: P.trans("v_rcp_f32 v6, v7", ["v6"], ["v7"])]
    spread(fin, fv0 + 57, fv0 + 60)
    def onorm(q, dt):
        ab = VQ + 32 * (q & 1) + 16 * dt; fb = VS + 16 * (q & 1) + 8 * dt
        ops = []
        for j in range(8):
            a = ab + 2 * j
            ops.append(vop(f"v_mul_f32 v{a}, v{a}, v6", [f"v{a}"], [f"v{a}", "v6"]))
            ops.append(vop(f"v_mul_f32 v{a+1}, v{a+1}, v6", [f"v{a+1}"], [f"v{a+1}", "v6"]))
            ops.append(cvt(fb + j, a))
        return ops
    for q in range(3):
        f = first[Vi(q + 1, 0)]
        spread(onorm(q, 0) + onorm(q, 1), f + 2, f + 14)
    f33 = first[Vi(3, 3)]
    spread(onorm(3, 0), f33 + 10, f33 + 14)
    fo3 = first[Oi(3, 0)]
    spread(onorm(3, 1), fo3 + 1, fo3 + 3)
    if cfg.otouch_at >= 0:
        f = first[Ki(cfg.otouch_at)]
        def otouch():
            S(f"s_cmp_lg_u32 s{sWave}, 0"); S("s_cbranch_scc1 L_not")
            V("v_lshlrev_b32 v19, 7, v0", ["v19"], ["v0"])
            S(f"s_mul_i32 s{sOff}, s{sB}, {32*896}")
            for i in range(4):
                P.vmem(f"buffer_load_dword a{64+i}, v19, {srd(SRD_O)}, s{sOff} offen", [f"a{64+i}"], ["v19"])
                S(f"s_add_u32 s{sOff}, s{sOff}, 8192")
            P.lab("L_not")
        fill[f].append(otouch)
    pre[first[Oi(0, 0)]].append(lambda: P.raw("s_waitcnt vmcnt(0)", "wait"))
    def epi(n, nt):
        ab = 32 * n + 16 * nt
        tb = VP + 24 * ((2 * n + nt) % 4)
        ops = []
        for j in range(2):
            for x in range(8): ops.append(accrd(tb + 8 * j + x, ab + 8 * j + x))
            for x in range(4): ops.append(cvt(tb + 16 + 4 * j + x, tb + 8 * j + 2 * x))
            dd = tb + 16 + 4 * j
            ops.append(lambda dd=dd, j=j: P.vmem(f"buffer_store_dwordx4 v[{dd}:{dd+3}], v5, {srd(SRD_P)}, s{sOff} offen offset:{(2*nt+j)*256} sc1",
                                                  [], R("v", dd, 4) + ["v5"], wide_store=R("v", dd, 4)))
        return ops
    def epi_off():
        S(f"s_lshl_b32 s{sOff}, s{sRot}, 12"); S(f"s_add_u32 s{sOff}, s{sOff}, s{sOffW}")
        S(f"s_add_u32 s{sRot}, s{sRot}, 1"); S(f"s_cmp_eq_u32 s{sRot}, 7"); S(f"s_cselect_b32 s{sRot}, 0, s{sRot}")
    spread([epi_off] + epi(0, 0) + epi(0, 1), fo3 + 9, fo3 + 13)
    for n in range(1, 7):
        f = fo3 + 8 * n
        if n < 6:
            spread([epi_off] + epi(n, 0), f + 6, f + 9)
            spread(epi(n, 1), f + 10, f + 13)
        else:
            spread([epi_off] + epi(n, 0), f + 6, f + 7)
            fill[N - 1] += epi(n, 1)
    if cfg.cst:
        for k, it in enumerate(cfg.cst): pre[first[it]].append(lambda k=k: stamp(P, cfg, 1 + k))
    else:
        pre[first[Ki(0)]].append(lambda: stamp(P, cfg, 2))
        pre[fo3].append(lambda: stamp(P, cfg, 4))

    stubs = Prog(); P.tail_blocks.append(stubs)
    seen = {"thr": 0}
    chk = {}
    for it in corder:
        if endidx[it] > seen["thr"] and not cfg.nosync:
            chk[it] = endidx[it]; seen["thr"] = endidx[it]
    def flagread(): P.ds("ds_read_b32 v3, v2 offset:12", ["v3"], ["v2"])
    def cmp(it): V(f"v_cmp_le_u32 vcc, {chk[it]}, v3", ["vcc"], ["v3"])
    def branch(it):
        nm = lname(it)
        S(f"s_cbranch_vccz L_cs{nm}")
        P.lab(f"L_cb{nm}")
        stubs.lab(f"L_cs{nm}")
        stubs.raw("ds_read_b32 v3, v2 offset:12"); stubs.raw("s_waitcnt lgkmcnt(0)")
        stubs.raw(f"v_cmp_le_u32 vcc, {chk[it]}, v3"); stubs.raw(f"s_cbranch_vccz L_cs{nm}"); stubs.raw(f"s_branch L_cb{nm}")
    ci = {it: i for i, it in enumerate(corder)}
    xq = []
    def starts(j): return j < N and first[M[j]["item"]] == j
    def reads(j):
        m = M[j]; it = m["item"]
        if first[it] == j:
            if 0 < ci[it] <= lastrel + 1: P.ds("ds_add_u32 v1, v4", [], ["v1", "v4"])
            if it in chk: branch(it)
            if j == 0 and cfg.s1at == 'first' and not cfg.cst: stamp(P, cfg, 1)
            if it[0] == 'Q' and it[1] % 2 == 0:
                for s in range(4): xq.append((16 * ((it[1] // 2) & 1) + 4 * s, 24 + s, loc[(it, 'x')]))
        if xq: rd128(*xq.pop(0))
        m["rd"](RING + 4 * (j % 8))
        if starts(j + 4) and M[j + 4]["item"] in chk: flagread()
        if starts(j + 1) and M[j + 1]["item"] in chk: cmp(M[j + 1]["item"])
    if corder[0] in chk:
        flagread(); cmp(corder[0])
    for j in range(cfg.PD): reads(j)
    for i, m in enumerate(M):
        for op in pre[i]: op()
        if cfg.pairwait and i % 2 == 0 and i + 1 < N:
            P._need(R("a", RING + 4 * ((i + 1) % 8), 4))
        P.mfma(m["d"], ("a", RING + 4 * (i % 8)), m["b"], m["c"])
        if i + cfg.PD < N: reads(i + cfg.PD)
        for op in fill[i]: op()

from gen_main import tail_setup, reduce_part
def write_stamps(P, cfg):
    if not cfg.stamps: return
    S, V = P.salu, P.valu
    P.raw("s_waitcnt vmcnt(0)", "wait")
    stamp(P, cfg, 7)
    P.raw("s_waitcnt lgkmcnt(0)", "wait")
    S(f"s_cmp_eq_u32 s{sWave}, 1"); S("s_cbranch_scc1 L_end")
    S(f"s_cmp_eq_u32 s{sWave}, 2"); S("s_cbranch_scc1 L_end")
    S(f"s_add_u32 s{sWs}, s{sWs}, 0x8000000"); S(f"s_addc_u32 s{sWs+1}, s{sWs+1}, 0")
    S(f"s_lshl_b32 s3, s2, 7"); S(f"s_and_b32 s{sT1}, s{sWave}, 1"); S(f"s_lshl_b32 s{sT1}, s{sT1}, 6"); S(f"s_add_u32 s3, s3, s{sT1}")
    V("v_mov_b32 v6, s3", ["v6"])
    for r in range(16): V(f"v_mov_b32 v{8+r}, s{sStamp+r}", [f"v{8+r}"])
    for k in range(4):
        P.raw(f"global_store_dwordx4 v6, v[{8+4*k}:{11+4*k}], s[{sWs}:{sWs+1}] offset:{16*k}", "vmem")

def gen(cfg, verbose=False):
    corder = cons_order()
    ci = {it: i for i, it in enumerate(corder)}
    order = issue_order(cfg)
    assert sorted(order) == sorted(corder)
    loc, need = alloc(order, ci, cfg.nxb)
    if verbose:
        print(" ".join(f"{lname(it)}@{loc[(it,'m')]//UNIT}<{lname(corder[need[it]]) if need[it]>=0 else '-'}" for it in order))
    endidx = {}; c = 0
    for it in order:
        c += 4 * sum(n for _, n in parts(it))
        endidx[it] = c
    lastrel = max(need.values())
    P = Prog()
    prologue(P, cfg)
    loader(P, cfg, order, loc, need, endidx)
    tail_setup(P, cfg)
    P.raw("s_barrier", "salu")
    P.salu("s_mov_b64 exec, 1")
    P.raw(f"global_atomic_add v20, v21, s[{sDbg}:{sDbg+1}] sc1", "vmem")
    P.lab("L_poll")
    for _ in range(cfg.pollgap): P.raw("s_nop 15", "other")
    P.raw(f"global_load_dword v22, v20, s[{sDbg}:{sDbg+1}] sc1", "vmem")
    P.raw("s_waitcnt vmcnt(0)", "wait")
    P.valu("v_readfirstlane_b32 s3, v22", ["s3"], ["v22"])
    P.salu("s_cmp_lt_u32 s3, 16"); P.salu("s_cbranch_scc1 L_poll")
    P.salu("s_mov_b64 exec, -1")
    P.salu("s_branch L_join")
    P.lab("L_cons")
    consumer(P, cfg, corder, loc, endidx, lastrel)
    if cfg.s1at == 'outend': stamp(P, cfg, 1)
    tail_setup(P, cfg)
    P.raw("s_waitcnt vmcnt(0)", "wait")
    if not cfg.cst: stamp(P, cfg, 5)
    P.raw("s_barrier", "salu")
    P.lab("L_join")
    P.raw("s_barrier", "salu")
    if not cfg.cst: stamp(P, cfg, 6)
    reduce_part(P, cfg)
    write_stamps(P, cfg)
    P.lab("L_end")
    P.raw("s_endpgm", "salu")
    P.finalize()
    body = P.text()
    for Q in P.tail_blocks:
        Q.finalize(); body += "\n" + Q.text()
    hdr = [f"; fused attention blocks A|B: one workgroup per (block, batch, head); waves 0-2 compute, wave 3 streams",
           "; @launch grid=(256,1,1) block=(256,1,1) lds=163840",
           '.amdgcn_target "amdgcn-amd-amdhsa--gfx950"', ".text", f".globl {NAME}_kernel", ".p2align 8",
           f".type {NAME}_kernel,@function", f"{NAME}_kernel:"]
    ftr = ["  s_endpgm", "L_codeend:", '.section .rodata,"a"', ".p2align 6", f".amdhsa_kernel {NAME}_kernel",
           "  .amdhsa_next_free_vgpr 512", "  .amdhsa_next_free_sgpr 96", "  .amdhsa_accum_offset 256",
           "  .amdhsa_group_segment_fixed_size 0", "  .amdhsa_kernarg_size 104", "  .amdhsa_user_sgpr_count 2",
           "  .amdhsa_user_sgpr_kernarg_segment_ptr 1", "  .amdhsa_system_sgpr_workgroup_id_x 1", ".end_amdhsa_kernel"]
    return "\n".join(hdr) + "\n" + body + "\n" + "\n".join(ftr) + "\n", P

if __name__ == "__main__":
    out = sys.argv[1]
    kw = {}
    for a in sys.argv[2:]:
        k, v = a.split("=", 1)
        kw[k] = eval(v)
    txt, P = gen(Cfg(**kw), verbose=True)
    open(out, "w").write(txt)
    print(out, len(txt), "bytes", dict(P.stats()))
```

```python
import sys, math, struct, re
from asmlib import Prog, R, F
NAME = "concat_heads__mha_block_cached__gqa_block_cached__near_ridge"
UNIT = 4096
NU = 39
FLAG = NU * UNIT
PART = 86016

def f32bits(x):
    return struct.unpack("<I", struct.pack("<f", x))[0]

class Cfg:
    PD = 6
    D_kv = 48
    D_w = 32
    D_r = 48
    kfirst = 0
    nin = 0
    ck = (3, 6)
    lastsplit = True
    cklag = 2
    clr_at = 1
    arr_at = ('K', 2)
    arrmode = 'atomic'
    arrsh = 4
    tok_at = ('Q', 10)
    tokrd = ('K', 4)
    tokpol = " sc1"
    xdir = False
    xpre = 2
    xstep = 2
    code2 = False
    own = True
    otpol = ""
    jpol = ""
    otl = None
    otd = 1
    sched = None
    ot2 = ()
    sm = None
    smc = 0
    smr = (14, 44)
    opol0 = None
    nored = False
    nostore = False
    noflag = False
    kmix = ()
    oearly = ()
    o3early = 0
    stamps = False
    touch = False
    wtouch = True
    nxb = 4
    wpol = " nt"
    xpol = ""
    opol = " nt"
    tpol = " nt"
    otouch_at = ('Q', 2)
    slowstep = 8
    order = None
    nosync = False
    noload = False
    cyc = False
    ncode = 1
    pairwait = True
    early = False
    s1at = 'first'
    pollgap = 8
    rot2 = True
    plines = 1
    toreg = False
    earlybar = False
    cst = None
    lst = None
    spin = None
    tick = True
    tkpol = " sc0 sc1"
    tkst = False
    def __init__(self, **kw):
        for k, v in kw.items():
            assert hasattr(Cfg, k), k
            setattr(self, k, v)

sX, sK, sV, sWq, sWo, sWs, sOut, sDbg = 4, 6, 8, 10, 12, 14, 16, 18
SRD_K, SRD_V, SRD_W, SRD_X, SRD_O, SRD_P, SRD_G, SRD_OUT = 24, 28, 32, 36, 40, 44, 48, 52
SRD_F, SRD_D = 96, 28
FLG = 0x4000000
sRotO = 100
sB, sWhich, sH, sGrp, sWave = 56, 57, 58, 59, 60
sFlag, sPub, sOff, sRot, sOffW, sOffX, sC, sNC, sT0 = 61, 62, 63, 64, 65, 66, 67, 68, 69
sStamp = 70
sT1, sT2, sT3 = 86, 87, 88
sNeed, sCnt, sRet = 89, 93, 94
sPc = 22

def srd(n): return f"s[{n}:{n+3}]"

Qi = lambda i: ('Q', i)
Ki = lambda t: ('K', t)
Vi = lambda q, j: ('V', q, j)
Oi = lambda q, n: ('O', q, n)

def cons_order(cfg):
    o = [Qi(i) for i in range(14)] + [Ki(t) for t in range(16)]
    o += [Vi(0, j) for j in range(4)]
    for q in range(1, 4):
        o += [Vi(q, 0)] + ([Oi(q - 1, n) for n in range(7)] if q - 1 < cfg.nin else []) + [Vi(q, j) for j in range(1, 4)]
    o += [Oi(q, n) for n in range(7) for q in range(cfg.nin, 4)]
    return o

def expand(spec):
    while True:
        m = re.search(r"\(([^()]*)\)x(\d+)", spec)
        if not m: return spec
        spec = spec[:m.start()] + " ".join([m.group(1)] * int(m.group(2))) + spec[m.end():]

def parse_sched(cfg):
    toks = expand(cfg.sched).split()
    nr = sum(int(t[1:]) for t in toks if t[0] == 'R')
    rest = cons_order(cfg)[30:]
    o = []; q = r = c = 0; k = nr; nt = 0
    for t in toks:
        n = int(t[1:]) if len(t) > 1 else 1
        for _ in range(n):
            if t[0] == 'Q': o.append(Qi(q)); q += 1
            elif t[0] == 'K': o.append(Ki(k)); k += 1
            elif t[0] == 'R': o.append(('R', r)); r += 1
            elif t[0] == 'C': o.append(('C', c)); c += 1
            elif t[0] == 'v': o.append(rest.pop(0))
            elif t[0] in 'Tt': o.append(('T', nt, " nt" if t[0] == 'T' else "")); nt += 1
            else: assert 0, t
    assert q == 14 and k == 16 and c == nr, (q, k, c, nr)
    return o + rest

def issue_order(cfg):
    if cfg.order: return list(cfg.order)
    if cfg.sched: return parse_sched(cfg)
    o = [Ki(t) for t in range(cfg.kfirst)]
    nk = cfg.kfirst
    mix = dict(cfg.kmix)
    for i in range(14):
        o.append(Qi(i))
        for _ in range(mix.get(i, 0)):
            o.append(Ki(nk)); nk += 1
    o += [Ki(t) for t in range(nk, 16)]
    rest = cons_order(cfg)[30:]
    fin = rest[rest.index(Vi(3, 3)) + 1:]
    for at, cnt in cfg.oearly:
        e = fin[:cnt]; fin = fin[cnt:]
        rest = [x for x in rest if x not in e]
        p = rest.index(at) + 1
        rest = rest[:p] + e + rest[p:]
    return o + rest

def parts(it, nxb):
    if it[0] == 'Q': return ([('x', 3)] if it[1] % 2 == 0 and nxb else []) + [('m', 4)]
    if it[0] == 'O': return [('m', 2)]
    if it[0] in 'TPJWR': return []
    return [('m', 4)]

def citem(it): return Ki(it[1]) if it[0] == 'C' else it

def alloc(order, ci, nxb):
    occ = [-1] * NU
    loc, need = {}, {}
    issued = set(); done = set()
    for it0 in order:
        it = citem(it0)
        p = -1
        for nm, n in parts(it, nxb):
            best = None
            for s in (range(NU - n + 1) if nm != 'x' else [NU - 3 * (k + 1) for k in range(nxb)]):
                if nm != 'x' and Qi(12) not in done and s + n > NU - 3 * nxb: continue
                seg = occ[s:s + n]
                cross = (s * UNIT) // 65536 != ((s + n) * UNIT - 1) // 65536
                key = (max(seg), cross, sum(max(seg) - x for x in seg), (s % 4 != 0) if n == 4 else (-s if nm == 'x' else s % 2), s)
                if best is None or key < best[0]: best = (key, s)
            s = best[1]
            p = max(p, max(occ[s:s + n]))
            for u in range(s, s + n): occ[u] = ci[it]
            loc[(it, nm)] = s * UNIT
        need[it0] = p
        assert all(j in issued for j in range(p + 1)), (it, p)
        if it in ci: issued.add(ci[it])
        done.add(it)
    return loc, need

STASH = [("v", 64), ("v", 128), ("v", 192), ("a", 0), ("a", 64), ("a", 128), ("a", 192)]

def stamp(P, cfg, i):
    if cfg.stamps:
        P.raw(f"{'s_memtime' if cfg.cyc else 's_memrealtime'} s[{sStamp+2*i}:{sStamp+2*i+1}]", "salu")

def decode(P, cfg):
    S = P.salu
    S(f"s_bfe_u32 s{sWhich}, s2, 0x10002")
    S(f"s_bfe_u32 s{sB}, s2, 0x30003")
    S(f"s_and_b32 s{sH}, s2, 3"); S(f"s_lshl_b32 s{sH}, s{sH}, 2")
    S(f"s_lshr_b32 s3, s2, 6"); S(f"s_add_u32 s{sH}, s{sH}, s3")
    S(f"s_lshl_b32 s{sGrp}, s{sWhich}, 3"); S(f"s_add_u32 s{sGrp}, s{sGrp}, s{sB}")
    if cfg.rot2:
        S(f"s_lshl_b32 s3, s3, 1"); S(f"s_add_u32 s{sRot}, s{sB}, s3")
        S(f"s_sub_u32 s3, s{sRot}, 7"); S(f"s_cselect_b32 s{sRot}, s{sRot}, s3")
    else:
        S(f"s_cmp_eq_u32 s{sB}, 7"); S(f"s_cselect_b32 s{sRot}, 0, s{sB}")
    S(f"s_cmp_eq_u32 s{sB}, 7"); S(f"s_cselect_b32 s{sRotO}, 0, s{sB}")
    S(f"s_lshl_b32 s3, s{sB}, 4"); S(f"s_add_u32 s3, s3, s{sH}"); S(f"s_lshl_b32 s{sT0}, s3, 18")

def ptrs(P, src):
    S = P.salu
    S(f"s_bfe_u32 s3, {src}, 0x10002")
    S(f"s_mul_i32 s3, s3, 40")
    S("s_add_u32 s20, s0, s3"); S("s_addc_u32 s21, s1, 0")
    S(f"s_load_dwordx8 s[4:11], s[20:21], 0")
    S(f"s_load_dwordx2 s[12:13], s[20:21], 32")

sTk = 87
def prologue(P, cfg):
    S = P.salu
    S("s_cmp_ge_u32 s2, 256"); S("s_cbranch_scc1 L_end")
    stamp(P, cfg, 0)
    if cfg.tick:
        S(f"s_load_dwordx4 s[16:19], s[0:1], 80")
        S(f"s_load_dwordx2 s[14:15], s[0:1], 96")
        S(f"s_getreg_b32 s{sTk}, hwreg(HW_REG_XCC_ID, 0, 3)")
        P.valu("v_lshrrev_b32 v3, 6, v0", ["v3"], ["v0"])
        P.valu(f"v_readfirstlane_b32 s{sWave}, v3", [f"s{sWave}"], ["v3"])
    else:
        ptrs(P, "s2")
        S(f"s_load_dwordx2 s[14:15], s[0:1], 96")
        S(f"s_load_dwordx4 s[16:19], s[0:1], 80")
        P.valu("v_lshrrev_b32 v3, 6, v0", ["v3"], ["v0"])
        if cfg.ncode and not cfg.code2:
            S(f"s_getpc_b64 s[{sPc}:{sPc+1}]")
            P.lab("L_pc")
            S(f"s_bfe_u32 s3, s2, 0x30003"); S(f"s_lshl_b32 s3, s3, 13")
            P.valu("v_lshl_add_u32 v6, v0, 5, s3", ["v6"], ["v0"])
            for i in range(cfg.ncode):
                if i: P.valu("v_add_u32 v6, 0x10000, v6", ["v6"], ["v6"])
                P.valu("v_min_u32 v7, L_codeend-L_pc-4, v6", ["v7"], ["v6"])
                P.vmem(f"global_load_dword a{72+i}, v7, s[{sPc}:{sPc+1}]", [f"a{72+i}"], ["v7"])
        P.valu(f"v_readfirstlane_b32 s{sWave}, v3", [f"s{sWave}"], ["v3"])
        decode(P, cfg)
    P.valu("v_and_b32 v0, 63, v0", ["v0"], ["v0"])
    if cfg.tick:
        S(f"s_cmp_eq_u32 s{sWave}, 3"); S("s_cbranch_scc1 L_ld0")
        if cfg.ncode:
            S(f"s_getpc_b64 s[{sPc}:{sPc+1}]")
            P.lab("L_pc")
            S(f"s_sub_u32 s{sPc}, s{sPc}, L_pc-{NAME}_kernel"); S(f"s_subb_u32 s{sPc+1}, s{sPc+1}, 0")
            S("s_lshr_b32 s3, s2, 3"); S(f"s_cmp_eq_u32 s{sWave}, 1"); S("s_cselect_b32 s3, 0, s3")
            S(f"s_cmp_eq_u32 s{sWave}, 0"); S("s_cselect_b32 s20, 0, s2"); S("s_xor_b32 s3, s3, s20")
            S("s_and_b32 s3, s3, 7"); S("s_lshl_b32 s3, s3, 13")
            P.valu("v_lshl_add_u32 v6, v0, 7, s3", ["v6"], ["v0"])
            P.valu(f"v_min_u32 v7, L_codeend-{NAME}_kernel-4, v6", ["v7"], ["v6"])
            P.vmem(f"global_load_dword a72, v7, s[{sPc}:{sPc+1}]", ["a72"], ["v7"])
        S("s_branch L_cons")
        P.lab("L_ld0")
        S(f"s_bfe_u32 s3, s2, 0x20006"); S(f"s_lshl_b32 s3, s3, 3"); S(f"s_or_b32 s{sTk}, s{sTk}, s3")
        P.valu("v_mov_b32 v61, 1", ["v61"])
        S(f"s_mov_b32 s{sT3}, 0")
        ticket(P, cfg, True)
    ldsinit(P)
    if not cfg.tick:
        S(f"s_cmp_lg_u32 s{sWave}, 3"); S("s_cbranch_scc1 L_cons")

def ticket(P, cfg, first):
    S = P.salu
    S(f"s_lshl_b32 s3, s{sTk}, 3"); S("s_add_u32 s3, s3, 4")
    P.valu("v_mov_b32 v60, s3", ["v60"])
    if first: P.raw("s_waitcnt lgkmcnt(0)", "wait")
    S("s_mov_b64 exec, 1")
    P.vmem(f"global_atomic_add v62, v60, v61, s[{sDbg}:{sDbg+1}]{cfg.tkpol}", ["v62"], ["v60", "v61"])
    S("s_mov_b64 exec, -1")
    ptrs(P, f"s{sTk}")

def ldsinit(P):
    S = P.salu
    P.valu("v_lshlrev_b32 v2, 4, v0", ["v2"], ["v0"])
    P.valu(f"v_add_u32 v2, {FLAG}, v2", ["v2"], ["v2"])
    S(f"s_lshl_b32 s3, s{sWave}, 2")
    P.valu(f"v_add_u32 v1, s3, v2", ["v1"], ["v2"])
    P.valu(f"v_mov_b32 v2, {FLAG}", ["v2"])
    P.valu("v_mov_b32 v4, 0", ["v4"])
    P.ds("ds_write_b32 v1, v4", [], ["v1", "v4"])
    P.ds("ds_write_b32 v1, v4 offset:1024", [], ["v1", "v4"])

def mk_srd(P, dst, base, off, size):
    S = P.salu
    if off is None:
        S(f"s_mov_b32 s{dst}, s{base}"); S(f"s_mov_b32 s{dst+1}, s{base+1}")
    else:
        S(f"s_add_u32 s{dst}, s{base}, {off}"); S(f"s_addc_u32 s{dst+1}, s{base+1}, 0")
    S(f"s_mov_b32 s{dst+2}, {size}"); S(f"s_mov_b32 s{dst+3}, 0x20000")
def srd_w(P):
    P.salu(f"s_lshl_b32 s3, s{sH}, 9"); mk_srd(P, SRD_W, sWq, "s3", 447 * 8192 + 512)
def srd_x(P):
    P.salu(f"s_mul_i32 s3, s{sB}, 86016"); mk_srd(P, SRD_X, sX, "s3", 86016)
def srd_o(P):
    P.salu(f"s_mul_i32 s3, s{sH}, {256*896}"); mk_srd(P, SRD_O, sWo, "s3", 256 * 896)

def srd_f(P):
    P.salu(f"s_lshl_b32 s3, s{sGrp}, 11"); P.salu(f"s_add_u32 s3, s3, {FLG}"); mk_srd(P, SRD_F, sWs, "s3", 2048)
def tok_off(P):
    S = P.salu
    S(f"s_lshr_b32 s3, s{sB}, 2"); S(f"s_lshl_b32 s3, s3, 1"); S(f"s_add_u32 s3, s3, s{sWhich}"); S(f"s_lshl_b32 s3, s3, 2")
    S(f"s_and_b32 s20, s{sB}, 3"); S(f"s_add_u32 s3, s3, s20"); S(f"s_lshl_b32 s3, s3, 4")

def sm_list(cfg):
    if cfg.sm == 'a': return [128 * i for i in range(224)]
    if cfg.sm == 'b': return [64 * i for i in range(448)]
    return [256 * i + 124 for i in range(112)]
def sm_base(P, extra=None):
    S = P.salu
    S(f"s_mul_i32 s3, s{sH}, {256*896}"); S(f"s_mul_i32 s20, s{sB}, 28672"); S("s_add_u32 s3, s3, s20")
    if extra: S(f"s_mul_i32 s20, s{sWave}, {extra}"); S("s_add_u32 s3, s3, s20")
    S(f"s_add_u32 s22, s{sWo}, s3"); S(f"s_addc_u32 s23, s{sWo+1}, 0")
def sm_load(P, cfg, off):
    P.raw(f"s_load_dwordx2 s[20:21], s[22:23], {off}" if cfg.sm == 'c' else f"s_load_dword s20, s[22:23], {off}", "salu")

def lname(it): return "_".join(str(x) for x in it)

def loader(P, cfg, order, loc, need, before_drain=None):
    S, V = P.salu, P.valu
    P.lab("L_loader")
    P.ds_q = []
    V("v_lshrrev_b32 v5, 5, v0", ["v5"], ["v0"])
    V("v_and_b32 v6, 31, v0", ["v6"], ["v0"])
    V("v_lshlrev_b32 v7, 9, v5", ["v7"], ["v5"])
    for t in range(8):
        V(f"v_add_u32 v3, {2*t}, v5", ["v3"], ["v5"])
        V(f"v_xor_b32 v3, v3, v6", ["v3"], ["v3", "v6"])
        V(f"v_lshl_add_u32 v{8+t}, v3, 4, v7", [f"v{8+t}"], ["v3", "v7"])
    def lane_setup():
        for p in range(2):
            V(f"v_add_u32 v3, {2*p}, v5", ["v3"], ["v5"])
            V("v_lshlrev_b32 v3, 2, v3", ["v3"], ["v3"])
            V("v_xor_b32 v3, v3, v6", ["v3"], ["v3", "v6"])
            V("v_lshlrev_b32 v18, 13, v5", ["v18"], ["v5"])
            V(f"v_lshl_add_u32 v3, v3, 4, v18", ["v3"], ["v3", "v18"])
            V(f"v_add_u32 v{20+p}, {p*15360}, v3", [f"v{20+p}"], ["v3"])
            V(f"v_add_u32 v{22+p}, {(p+2)*15360}, v3", [f"v{22+p}"], ["v3"])
        V("v_lshrrev_b32 v36, 3, v0", ["v36"], ["v0"])
        V("v_mul_u32_u24 v37, 896, v36", ["v37"], ["v36"])
        V("v_and_b32 v38, 7, v0", ["v38"], ["v0"])
        V("v_lshrrev_b32 v35, 4, v0", ["v35"], ["v0"])
        for p in range(0 if cfg.xdir else 2):
            V(f"v_add_u32 v3, {4*p}, v35", ["v3"], ["v35"])
            V("v_xor_b32 v3, v3, v38", ["v3"], ["v3", "v38"])
            V("v_lshl_add_u32 v3, v3, 4, v37", ["v3"], ["v3", "v37"])
            V(f"v_add_u32 v{24+p}, {p*6144}, v3", [f"v{24+p}"], ["v3"])
            V(f"v_add_u32 v{26+p}, {(p+2)*6144}, v3", [f"v{26+p}"], ["v3"])
        V("v_and_b32 v3, 1, v35", ["v3"], ["v35"])
        V("v_lshlrev_b32 v3, 2, v3", ["v3"], ["v3"])
        V("v_xor_b32 v3, v3, v38", ["v3"], ["v3", "v38"])
        V("v_lshl_add_u32 v28, v3, 4, v37", ["v28"], ["v3", "v37"])
        V("v_lshlrev_b32 v36, 9, v36", ["v36"], ["v36"])
        V("v_lshl_add_u32 v16, v3, 4, v36", ["v16"], ["v3", "v36"])
        for j in range(1, 4):
            V(f"v_add_u32 v{28+j}, {j*6144}, v28", [f"v{28+j}"], ["v28"])
            V(f"v_add_u32 v{16+j}, {j*3072}, v16", [f"v{16+j}"], ["v16"])
    if cfg.tick:
        lane_setup()
        P.lab("L_tk")
        P.raw("s_waitcnt vmcnt(0) lgkmcnt(0)", "wait")
        V("v_readfirstlane_b32 s3, v62", ["s3"], ["v62"])
        S("s_cmp_lt_u32 s3, 8"); S("s_cbranch_scc0 L_tkx")
        T = Prog(); P.tail_blocks.append(T)
        T.lab("L_tkx")
        T.salu(f"s_add_u32 s{sT3}, s{sT3}, 1"); T.salu(f"s_cmp_ge_u32 s{sT3}, 32"); T.salu("s_cbranch_scc1 L_tky")
        T.salu(f"s_add_u32 s{sTk}, s{sTk}, 1"); T.salu(f"s_and_b32 s{sTk}, s{sTk}, 31")
        ticket(T, cfg, False)
        T.salu("s_branch L_tk")
        T.lab("L_tky")
        ptrs(T, "s2"); T.raw("s_waitcnt lgkmcnt(0)", "wait"); T.salu("s_branch L_tkz")
        S("s_lshl_b32 s2, s3, 3")
        S(f"s_and_b32 s3, s{sTk}, 7"); S("s_or_b32 s2, s2, s3")
        S(f"s_lshr_b32 s3, s{sTk}, 3"); S("s_lshl_b32 s3, s3, 6"); S("s_or_b32 s2, s2, s3")
        P.lab("L_tkz")
        if cfg.tkst: stamp(P, cfg, 1)
        V("v_mov_b32 v3, s2", ["v3"])
        P.ds("ds_write_b32 v2, v3 offset:2048", [], ["v2", "v3"])
        decode(P, cfg)
    else:
        P.raw("s_waitcnt lgkmcnt(0)", "wait")
    mk_srd(P, SRD_K, sK, f"s{sT0}", 262144)
    if cfg.early: stamp(P, cfg, 1)
    st = dict(c=0, done=0, pub=0, barrier=False, pre=False)
    ends = []
    cop = {}
    def crossed(done):
        e = [e for it, e in ends if e <= done]
        return max(e) if e else 0
    def publish(n):
        V(f"v_mov_b32 v4, {n}", ["v4"])
        P.ds("ds_max_i32 v1, v4", [], ["v1", "v4"])
        if cfg.sm: P.ds_q = []
    def need_barrier():
        if not st["barrier"]:
            P.lgkm0(); P.raw("s_barrier", "salu"); st["barrier"] = True
    def pollread(Q):
        Q.ds("ds_read_b96 v[32:34], v2", ["v32", "v33", "v34"], ["v2"])
        if cfg.sm: Q.ds_q = []
    def polluse(Q):
        Q.valu("v_min3_u32 v35, v32, v33, v34", ["v35"], ["v32", "v33", "v34"])
        Q.valu(f"v_readfirstlane_b32 s{sFlag}, v35", [f"s{sFlag}"], ["v35"])
    Q = Prog(); Q.lab("L_slow")
    def qpoll():
        pollread(Q)
        if cfg.sm: Q.raw("s_nop 15", "other")
        polluse(Q)
        Q.salu(f"s_cmp_gt_u32 s{sFlag}, s{sNeed}"); Q.salu("s_cbranch_scc1 L_slowret")
    qpoll()
    for n in range(56 - cfg.slowstep, -1, -cfg.slowstep):
        Q.raw(f"s_waitcnt vmcnt({n})", "wait")
        Q.salu(f"s_sub_u32 s3, s{sCnt}, {n}")
        Q.valu("v_mov_b32 v4, s3", ["v4"]); Q.ds("ds_max_i32 v1, v4", [], ["v1", "v4"])
        if n == 0: Q.lab("L_slowx")
        qpoll()
    Q.salu("s_branch L_slowx")
    Q.lab("L_slowret")
    Q.salu(f"s_setpc_b64 s[{sRet}:{sRet+1}]")
    P.tail_blocks.append(Q)
    def late_setup():
        mk_srd(P, SRD_V, sV, f"s{sT0}", 262144)
        srd_w(P); srd_o(P)
        if not cfg.xdir: srd_x(P)
        if not cfg.tick: lane_setup()
        S(f"s_mov_b32 s{sFlag}, 0")
        S(f"s_mov_b32 s{sT1}, s{sRot}")
        if cfg.sm:
            for r in (32, 33, 34): V(f"v_mov_b32 v{r}, 0", [f"v{r}"])
            sm_base(P)
    did_setup = False
    def group(lds, srdn, soff_setup, vregs, pol):
        S(f"s_mov_b32 m0, {lds}", ["m0"])
        soff_setup()
        for j, vr in enumerate(vregs):
            if cfg.toreg: P.vmem(f"buffer_load_dwordx4 a[{(st['c']%60)*4}:{(st['c']%60)*4+3}], v{vr}, {srd(srdn)}, s{sOff} offen offset:{j*1024}{pol}", [], [f"v{vr}"])
            elif not cfg.noload: P.vmem(f"buffer_load_dwordx4 v{vr}, {srd(srdn)}, s{sOff} offen offset:{j*1024}{pol} lds", [], [f"v{vr}"], dma=True)
            st["c"] += 1
    def after_group(D):
        if st["c"] - st["done"] > D:
            st["done"] = st["c"] - D
            P.raw(f"s_waitcnt vmcnt({D})", "wait")
            n = crossed(st["done"])
            if n > st["pub"]:
                need_barrier(); publish(st["done"]); st["pub"] = n
    known = {"k": -1}
    def eff_need(idx):
        p = need[order[idx]]
        if cfg.nosync or p <= known["k"]: return -1
        return p
    def prefetch_flags(idx):
        if idx + 1 < len(order) and eff_need(idx + 1) >= 0:
            need_barrier(); pollread(P); st["pre"] = True
    smq = {}
    if cfg.sm:
        L = sm_list(cfg)[3 * cfg.smc:]
        slots = [(i, g) for i in range(*cfg.smr) for g in range(2 if order[i][0] == 'O' else 4)]
        for j, off in enumerate(L): smq.setdefault(slots[j * len(slots) // len(L)], []).append(off)
    for idx, it in enumerate(order):
        if not did_setup and (it[0] != 'K' or idx >= 2):
            late_setup(); did_setup = True
        p = eff_need(idx)
        if p >= 0:
            assert st["pre"]; st["pre"] = False
            polluse(P)
            S(f"s_cmp_gt_u32 s{sFlag}, {p}"); S(f"s_cbranch_scc1 L_lb{lname(it)}")
            S(f"s_mov_b32 s{sNeed}, {p}"); S(f"s_mov_b32 s{sCnt}, {st['c']}")
            S(f"s_call_b64 s[{sRet}:{sRet+1}], L_slow")
            P.lab(f"L_lb{lname(it)}")
            P.ds_q = []
            known["k"] = p
        base = loc.get((citem(it), 'm'))
        def run(ng, srdn, so, vr, pol, D):
            for g in range(ng):
                if g == ng - 1: prefetch_flags(idx)
                group(base + g * 4096, srdn, lambda: so(g), vr(g), pol)
                for off in smq.get((idx, g), []): sm_load(P, cfg, off)
                if g == ng - 1: ends.append((it, st["c"]))
                after_group(D)
        if it[0] == 'T':
            prefetch_flags(idx)
            V("v_lshlrev_b32 v3, 7, v0", ["v3"], ["v0"])
            S(f"s_mul_i32 s{sOff}, s{sB}, {32*896}")
            for i in range(4):
                if i == 3: V(f"v_min_u32 v3, {31*128}, v3", ["v3"], ["v3"])
                P.vmem(f"buffer_load_dword v{56+i}, v3, {srd(SRD_O)}, s{sOff} offen{it[2] if len(it) > 2 else cfg.tpol}", [f"v{56+i}"], ["v3"])
                S(f"s_add_u32 s{sOff}, s{sOff}, 8192")
                st["c"] += 1
            after_group(cfg.D_w)
        elif it[0] == 'R':
            t = it[1]; rf, rb = STASH[t]
            for g in range(4):
                if g == 3: prefetch_flags(idx)
                S(f"s_mov_b32 s{sOff}, {t*16384 + g*4096}")
                for j in range(4):
                    r = rb + 16 * g + 4 * j; vr = 8 + 4 * (g & 1) + j
                    P.vmem(f"buffer_load_dwordx4 {F(rf, r, 4)}, v{vr}, {srd(SRD_K)}, s{sOff} offen offset:{j*1024} nt", R(rf, r, 4), [f"v{vr}"])
                    st["c"] += 1
                after_group(cfg.D_r)
            st[it] = st["c"]
        elif it[0] == 'C':
            t = it[1]; rf, rb = STASH[t]
            e = st[('R', t)]
            if st["done"] < e:
                st["done"] = e
                P.raw(f"s_waitcnt vmcnt({st['c'] - e})", "wait")
            need_barrier()
            for j in range(16):
                o = base + 1024 * j
                if st.get("seg") != o >> 16:
                    st["seg"] = o >> 16
                    V(f"v_lshlrev_b32 v39, 4, v0", ["v39"], ["v0"])
                    if o >> 16: V(f"v_add_u32 v39, {o & ~65535}, v39", ["v39"], ["v39"])
                if j == 12: prefetch_flags(idx)
                P.ds(f"ds_write_b128 v39, {F(rf, rb + 4 * j, 4)} offset:{o & 65535}", [], ["v39"] + R(rf, rb + 4 * j, 4))
            V(f"v_mov_b32 v4, {t+1}", ["v4"])
            P.ds("ds_max_i32 v1, v4 offset:1024", [], ["v1", "v4"])
            cop[Ki(t)] = t + 1
        elif it[0] == 'J':
            if not st.get("jreg"):
                V("v_lshlrev_b32 v39, 7, v0", ["v39"], ["v0"]); st["jreg"] = True
            for i in range(2):
                S(f"s_mov_b32 s{sOff}, {it[1]*16384 + i*8192}")
                P.vmem(f"buffer_load_dword a{80+(st['c']%64)}, v39, {srd(SRD_K)}, s{sOff} offen{cfg.jpol}", [f"a{80+(st['c']%64)}"], ["v39"])
                st["c"] += 1
            ends.append((it, st["c"]))
            after_group(cfg.D_w)
        elif it[0] == 'W':
            V("v_lshrrev_b32 v40, 2, v0", ["v40"], ["v0"]); V("v_lshlrev_b32 v40, 13, v40", ["v40"], ["v40"])
            V("v_and_b32 v41, 3, v0", ["v41"], ["v0"]); V("v_lshl_add_u32 v40, v41, 7, v40", ["v40"], ["v40", "v41"])
            S(f"s_mul_i32 s{sOff}, s{sB}, {56*8192}")
            for i in range(4):
                P.vmem(f"buffer_load_dword a{76+i}, v40, {srd(SRD_W)}, s{sOff} offen{cfg.jpol}", [f"a{76+i}"], ["v40"])
                S(f"s_add_u32 s{sOff}, s{sOff}, {16*8192}")
                st["c"] += 1
            ends.append((it, st["c"]))
            after_group(cfg.D_w)
        elif it[0] == 'P':
            V(f"v_and_b32 v3, {cfg.plines-1}, v0", ["v3"], ["v0"])
            V(f"v_mul_u32_u24 v3, {229376//cfg.plines}, v3", ["v3"], ["v3"])
            for i, sr in enumerate((SRD_K, SRD_V, SRD_O, SRD_V)):
                P.vmem(f"buffer_load_dword a{68+i}, v3, {srd(sr)}, 0 offen nt", [f"a{68+i}"], ["v3"])
                st["c"] += 1
            ends.append((it, st["c"]))
            after_group(cfg.D_kv)
        elif it[0] == 'Q':
            i = it[1]; D = cfg.D_w
            if i % 2 == 0:
                S(f"s_lshl_b32 s{sOffW}, s{sT1}, 19"); S(f"s_lshl_b32 s{sOffX}, s{sT1}, 7")
                S(f"s_add_u32 s{sT1}, s{sT1}, 1"); S(f"s_cmp_eq_u32 s{sT1}, 7"); S(f"s_cselect_b32 s{sT1}, 0, s{sT1}")
                for g in range(0 if cfg.xdir else 3):
                    group(loc[(it, 'x')] + g * 4096, SRD_X, lambda: S(f"s_add_u32 s{sOff}, s{sOffX}, {g*28672}"), [24, 25, 26, 27], cfg.xpol)
                    after_group(D)
            run(4, SRD_W, lambda g: S(f"s_add_u32 s{sOff}, s{sOffW}, {(i&1)*262144 + g*65536}"), lambda g: [20, 21, 22, 23], cfg.wpol, D)
        elif it[0] == 'K':
            t = it[1]
            run(4, SRD_K, lambda g: S(f"s_mov_b32 s{sOff}, {t*16384 + g*4096}"), lambda g: [8 + 4 * (g & 1) + j for j in range(4)], " nt", cfg.D_kv)
        elif it[0] == 'U':
            t = it[1]
            run(4, SRD_V, lambda g: S(f"s_mov_b32 s{sOff}, {t*16384 + g*4096}"), lambda g: [8 + 4 * (g & 1) + j for j in range(4)], " nt", cfg.D_kv)
            if t == 15: stamp(P, cfg, 3)
        elif it[0] == 'V':
            q, j = it[1], it[2]
            run(4, SRD_V, lambda g: S(f"s_mov_b32 s{sOff}, {(128*j + 32*g)*512 + q*128}"), lambda g: [16, 17, 18, 19], " nt", cfg.D_kv)
        else:
            q = it[1]
            D = cfg.D_w if all(x[0] == 'O' for x in order[idx:]) else cfg.D_kv
            if st.get("ocol") != it[2]:
                st["ocol"] = it[2]
                S(f"s_add_u32 s{sT2}, s{sRotO}, {it[2]}"); S(f"s_sub_u32 s3, s{sT2}, 7"); S(f"s_cselect_b32 s{sT2}, s{sT2}, s3")
                S(f"s_lshl_b32 s{sT2}, s{sT2}, 7")
            run(2, SRD_O, lambda g: S(f"s_add_u32 s{sOff}, s{sT2}, {(64*q + 32*g)*896}"), lambda g: [28, 29, 30, 31], cfg.opol0 if (it[2] == 0 and cfg.opol0 is not None) else cfg.opol, D)
        if it == cfg.tokrd:
            srd_f(P); tok_off(P)
            V("v_mov_b32 v53, s3", ["v53"])
            P.vmem(f"global_load_dword v54, v53, s[{sDbg}:{sDbg+1}]{cfg.tokpol}", ["v54"], ["v53"])
            st["c"] += 1; st["tok"] = st["c"]
        if it == Vi(3, 2) and cfg.arrmode != 'none':
            assert st["done"] >= st["tok"]
            P.lab("L_arr")
            V("v_cmp_eq_u32 vcc, 0, v54", ["vcc"], ["v54"])
            S("s_cbranch_vccnz L_arrx")
            T = Prog(); P.tail_blocks.append(T)
            T.lab("L_arrx")
            T.raw(f"global_load_dword v54, v53, s[{sDbg}:{sDbg+1}] sc1"); T.raw("s_waitcnt vmcnt(0)"); T.raw("s_branch L_arr")
        if cfg.earlybar or cfg.tick: need_barrier()
        if cfg.lst:
            if it in cfg.lst: stamp(P, cfg, 1 + cfg.lst.index(it))
        elif cfg.early:
            if it == Qi(0): stamp(P, cfg, 2)
            if it == Qi(3): stamp(P, cfg, 3)
        else:
            if it == Qi(13) and not cfg.tkst: stamp(P, cfg, 1)
            if it == Ki(15): stamp(P, cfg, 2)
            if it == Vi(3, 3): stamp(P, cfg, 3)
    if not cfg.lst: stamp(P, cfg, 4)
    if before_drain: st["c"] += before_drain()
    for it, e in ends:
        if e > st["pub"]:
            if e > st["done"]:
                st["done"] = e
                P.raw(f"s_waitcnt vmcnt({st['c']-e})", "wait")
            publish(st["done"]); st["pub"] = e
    r = {it: (12, e) for it, e in ends}
    r.update({it: (1036, e) for it, e in cop.items()})
    return r

class AddrReg:
    def __init__(self, reg): self.reg = reg; self.base = 0
RING = 224
VS = 32
VQ = 64
VP = 128
XB = 96
HIST = 32
def consumer(P, cfg, corder, loc, endidx, lastrel):
    S, V = P.salu, P.valu
    vm = {"n": 0}
    xidx = {}
    if cfg.tick:
        assert not (cfg.xdir or cfg.code2 or cfg.sm or cfg.touch)
        ldsinit(P)
    def xcol():
        S(f"s_lshl_b32 s{sOffX}, s{sRot}, 7")
        S(f"s_add_u32 s{sRot}, s{sRot}, 1"); S(f"s_cmp_eq_u32 s{sRot}, 7"); S(f"s_cselect_b32 s{sRot}, 0, s{sRot}")
    def xload(c, x):
        r = XB + 16 * c + 4 * x
        P.vmem(f"buffer_load_dwordx4 a[{r}:{r+3}], v24, {srd(SRD_X)}, s{sOffX} offen offset:{32*x}{cfg.xpol}", R("a", r, 4), ["v24"])
        vm["n"] += 1; xidx[(c, x)] = vm["n"]
    if cfg.xdir:
        V("v_and_b32 v36, 31, v0", ["v36"], ["v0"])
        V("v_lshrrev_b32 v37, 5, v0", ["v37"], ["v0"])
        S(f"s_mul_i32 s3, s{sWave}, {32*896}")
        V("v_mul_u32_u24 v24, 896, v36", ["v24"], ["v36"])
        V("v_lshl_add_u32 v37, v37, 4, s3", ["v37"], ["v37"])
        V("v_add_u32 v24, v24, v37", ["v24"], ["v24", "v37"])
    P.raw("s_waitcnt lgkmcnt(0)", "wait"); P.ds_q = []
    if cfg.xdir:
        srd_x(P)
        for c in range(cfg.xpre):
            xcol()
            for x in range(4): xload(c, x)
    if cfg.ncode and cfg.code2:
        S(f"s_getpc_b64 s[{sPc}:{sPc+1}]")
        P.lab("L_pc")
        S(f"s_sub_u32 s{sPc}, s{sPc}, L_pc-{NAME}_kernel"); S(f"s_subb_u32 s{sPc+1}, s{sPc+1}, 0")
        S("s_lshr_b32 s3, s2, 3"); S("s_lshl_b32 s3, s3, 11")
        V("v_and_b32 v6, 15, v0", ["v6"], ["v0"])
        V("v_lshl_add_u32 v6, v6, 7, s3", ["v6"], ["v6"])
        V(f"v_min_u32 v7, L_codeend-{NAME}_kernel-4, v6", ["v7"], ["v6"])
        P.vmem(f"global_load_dword a72, v7, s[{sPc}:{sPc+1}]", ["a72"], ["v7"])
        vm["n"] += 1
    if cfg.sm and cfg.smc:
        L = sm_list(cfg)
        sm_base(P, L[cfg.smc] - L[0])
        for off in L[:cfg.smc]: sm_load(P, cfg, off)
    if cfg.touch:
        srd_w(P); srd_x(P); srd_o(P)
        S(f"s_cmp_eq_u32 s{sWave}, 1"); S("s_cbranch_scc1 L_t1")
        S(f"s_cmp_eq_u32 s{sWave}, 2"); S("s_cbranch_scc1 L_t2")
        V("v_lshrrev_b32 v6, 2, v0", ["v6"], ["v0"]); V("v_lshlrev_b32 v6, 13, v6", ["v6"], ["v6"])
        V("v_and_b32 v7, 3, v0", ["v7"], ["v0"]); V("v_lshl_add_u32 v6, v7, 7, v6", ["v6"], ["v6", "v7"])
        S(f"s_mul_i32 s{sOff}, s{sB}, {56*8192}")
        for i in range(4 if cfg.wtouch else 0):
            P.vmem(f"buffer_load_dword a{64+i}, v6, {srd(SRD_W)}, s{sOff} offen{cfg.tpol}", [f"a{64+i}"], ["v6"])
            S(f"s_add_u32 s{sOff}, s{sOff}, {16*8192}")
        S("s_branch L_t2")
        P.lab("L_t1")
        V("v_lshlrev_b32 v6, 7, v0", ["v6"], ["v0"])
        S(f"s_and_b32 s{sOff}, s{sH}, 3"); S(f"s_mul_i32 s{sOff}, s{sOff}, {168*128}")
        for i in range(3):
            P.vmem(f"buffer_load_dword a{64+i}, v6, {srd(SRD_X)}, s{sOff} offen{cfg.tpol}", [f"a{64+i}"], ["v6"])
            S(f"s_add_u32 s{sOff}, s{sOff}, 8192")
        P.lab("L_t2")
    V("v_and_b32 v36, 31, v0", ["v36"], ["v0"])
    V("v_lshrrev_b32 v37, 5, v0", ["v37"], ["v0"])
    V("v_bfe_u32 v38, v0, 4, 1", ["v38"], ["v0"])
    V("v_bfe_u32 v39, v0, 2, 2", ["v39"], ["v0"])
    V("v_and_b32 v40, 3, v0", ["v40"], ["v0"])
    V("v_bfe_u32 v41, v0, 1, 1", ["v41"], ["v0"])
    V("v_and_b32 v42, 1, v0", ["v42"], ["v0"])
    V("v_lshl_add_u32 v41, v42, 1, v41", ["v41"], ["v41", "v42"])
    V("v_lshl_add_u32 v45, v37, 3, v39", ["v45"], ["v37", "v39"])
    V("v_lshlrev_b32 v45, 9, v45", ["v45"], ["v45"])
    V("v_lshl_add_u32 v45, v38, 5, v45", ["v45"], ["v38", "v45"])
    V("v_lshl_add_u32 v45, v41, 3, v45", ["v45"], ["v41", "v45"])
    for d3 in range(4):
        V(f"v_xor_b32 v44, {d3}, v39", ["v44"], ["v39"])
        V(f"v_lshl_add_u32 v{20+d3}, v44, 6, v45", [f"v{20+d3}"], ["v44", "v45"])
    S(f"s_lshl_b32 s3, s{sWave}, 12")
    V("v_lshlrev_b32 v43, 7, v36", ["v43"], ["v36"])
    V("v_add_u32 v43, s3, v43", ["v43"], ["v43"])
    V("v_bfe_u32 v42, v36, 1, 3", ["v42"], ["v36"])
    for s in range(0 if cfg.xdir else 4):
        V(f"v_add_u32 v44, {2*s}, v37", ["v44"], ["v37"])
        V("v_xor_b32 v44, v44, v42", ["v44"], ["v44", "v42"])
        V(f"v_lshl_add_u32 v{24+s}, v44, 4, v43", [f"v{24+s}"], ["v44", "v43"])
    V("v_and_b32 v42, 15, v36", ["v42"], ["v36"])
    V("v_lshlrev_b32 v43, 9, v36", ["v43"], ["v36"])
    for s7 in range(8):
        V(f"v_add_u32 v44, {2*s7}, v37", ["v44"], ["v37"])
        V("v_xor_b32 v44, v44, v42", ["v44"], ["v44", "v42"])
        V(f"v_lshl_add_u32 v{8+s7}, v44, 4, v43", [f"v{8+s7}"], ["v44", "v43"])
    V("v_lshl_add_u32 v42, v37, 2, v39", ["v42"], ["v37", "v39"])
    V("v_lshlrev_b32 v43, 7, v42", ["v43"], ["v42"])
    V("v_lshl_add_u32 v43, v38, 5, v43", ["v43"], ["v38", "v43"])
    V("v_lshrrev_b32 v44, 1, v39", ["v44"], ["v39"])
    V("v_lshl_add_u32 v43, v44, 6, v43", ["v43"], ["v44", "v43"])
    V("v_lshl_add_u32 v16, v40, 3, v43", ["v16"], ["v40", "v43"])
    V("v_xor_b32 v17, 64, v16", ["v17"], ["v16"])
    V("v_lshl_add_u32 v28, v41, 3, v43", ["v28"], ["v41", "v43"])
    V("v_xor_b32 v29, 64, v28", ["v29"], ["v28"])
    V("v_lshrrev_b32 v42, 2, v36", ["v42"], ["v36"])
    V("v_lshlrev_b32 v5, 9, v42", ["v5"], ["v42"])
    V("v_lshl_add_u32 v5, v37, 4, v5", ["v5"], ["v37", "v5"])
    V("v_lshl_add_u32 v5, v40, 5, v5", ["v5"], ["v40", "v5"])
    V("v_mov_b32 v4, 1", ["v4"])
    c = math.log2(math.e) / 16.0
    S(f"s_mov_b32 s{sC}, {hex(f32bits(c))}"); S(f"s_mov_b32 s{sNC}, {hex(f32bits(-c))}")
    if cfg.tick:
        P.lgkm0(); P.raw("s_barrier", "salu")
        P.ds("ds_read_b32 v3, v2 offset:2048", ["v3"], ["v2"])
        V("v_readfirstlane_b32 s2, v3", ["s2"], ["v3"])
        S("s_and_b32 s2, s2, 255")
        ptrs(P, "s2")
        decode(P, cfg)
    S(f"s_lshl_b32 s3, s{sGrp}, 4"); S(f"s_add_u32 s3, s3, s{sH}"); S(f"s_mul_i32 s3, s3, {PART}")
    mk_srd(P, SRD_P, sWs, "s3", PART)
    S(f"s_lshl_b32 s{sOffW}, s{sWave}, 12")
    srd_f(P)
    mk_srd(P, SRD_D, sDbg, None, 256)
    if cfg.tick: P.lgkm0()
    if cfg.otouch_at != -1 and not cfg.touch: srd_o(P)

    regs = {r: AddrReg(r) for r in range(8, 30)}
    def addr(reg, off):
        a = regs[reg]
        if not (0 <= off - a.base <= 65535 - 16):
            nb = (off // 65536) * 65536
            d = nb - a.base
            if d > 0: V(f"v_add_u32 v{reg}, {d}, v{reg}", [f"v{reg}"], [f"v{reg}"])
            else: V(f"v_subrev_u32 v{reg}, {-d}, v{reg}", [f"v{reg}"], [f"v{reg}"])
            a.base = nb
        return off - a.base
    def rd128(dst, reg, off):
        o = addr(reg, off)
        P.ds(f"ds_read_b128 {F('a', dst, 4)}, v{reg} offset:{o}", R('a', dst, 4), [f"v{reg}"])
    def rdtr(dst, reg, off):
        o = addr(reg, off)
        P.ds(f"ds_read_b64_tr_b16 {F('a', dst, 2)}, v{reg} offset:{o}", R("a", dst, 2), [f"v{reg}"])

    OFR = [VS, VS + 16, VQ, VQ + 32]
    def oacc(n, nt): return ("v", VP + 32 * (n & 1) + 16 * nt) if cfg.nin == 0 else ("a", 32 * n + 16 * nt)
    M = []
    for it in corder:
        sb = loc[(it, 'm')]
        if it[0] == 'Q':
            i = it[1]
            seq = [(ks, dt) for ks in range(2) for dt in range(8)] if i < 13 else [(ks, dt) for dt in range(8) for ks in range(2)]
            for ks, dt in seq:
                def rd(rb, sb=sb, ks=ks, dt=dt):
                    for pp in range(2): rdtr(rb + 2 * pp, 20 + (dt & 3), sb + ks * 8192 + pp * 2048 + 256 * (dt >> 2))
                xb = 16 * ((i // 2) & 1) + 4 * (2 * (i & 1) + ks)
                if cfg.xdir: xb = XB + 16 * (i // 2) + 4 * (2 * (i & 1) + ks)
                d = ("v", VP + 16 * dt)
                M.append(dict(item=it, rd=rd, d=d, b=("a", xb), c=None if (i == 0 and ks == 0) else d))
        elif it[0] == 'K':
            t = it[1]
            for s in range(16):
                def rd(rb, sb=sb, s=s): rd128(rb, 8 + (s & 7), sb + 256 * (s >> 3))
                d = ("v", VS + 16 * (t & 1))
                M.append(dict(item=it, rd=rd, d=d, b=("v", VQ + 4 * s), c=None if s == 0 else d))
        elif it[0] == 'V':
            q, j = it[1], it[2]
            seq = [(ks, dt) for ks in range(8) for dt in range(2)] if it != Vi(3, 3) else [(ks, dt) for dt in range(2) for ks in range(8)]
            for ks, dt in seq:
                def rd(rb, sb=sb, ks=ks, dt=dt):
                    for pp in range(2): rdtr(rb + 2 * pp, 16 + dt, sb + ks * 2048 + pp * 1024)
                d = ("v", VQ + 32 * (q & 1) + 16 * dt)
                M.append(dict(item=it, rd=rd, d=d, b=("v", VP + 32 * j + 4 * ks), c=None if (j == 0 and ks == 0) else d))
        else:
            q, n = it[1], it[2]
            seq = [(kk, nt) for kk in range(4) for nt in range(2)] if (q < 3 or (n == 0 and cfg.nin == 3)) else [(kk, nt) for nt in range(2) for kk in range(4)]
            for kk, nt in seq:
                def rd(rb, sb=sb, kk=kk, nt=nt):
                    for pp in range(2): rdtr(rb + 2 * pp, 28 + nt, sb + kk * 2048 + pp * 1024)
                d = oacc(n, nt)
                M.append(dict(item=it, rd=rd, d=d, nt=nt, b=("v", OFR[q] + 4 * kk), c=None if (q == 0 and kk == 0) else d))
    nl = 8 * (4 - cfg.nin)
    if cfg.lastsplit: M[-nl:] = [m for m in M[-nl:] if m["nt"] == 0] + [m for m in M[-nl:] if m["nt"] == 1]
    N = len(M)
    assert N == 960
    first = {}
    for i, m in enumerate(M): first.setdefault(m["item"], i)
    fill = {i: [] for i in range(-1, N + 1)}
    pre = {i: [] for i in range(N)}
    def spread(ops, g0, g1):
        n = g1 - g0 + 1
        for j, op in enumerate(ops):
            fill[g0 + (j * n) // len(ops)].append(op)
    def vop(text, w, r): return lambda: V(text, w, r)
    def cvt(dst, a): return vop(f"v_cvt_pk_bf16_f32 v{dst}, v{a}, v{a+1}", [f"v{dst}"], [f"v{a}", f"v{a+1}"])
    def accrd(dst, a): return vop(f"v_accvgpr_read_b32 v{dst}, a{a}", [f"v{dst}"], [f"a{a}"])
    f13 = first[Qi(13)]
    for dt in range(8):
        spread([cvt(VQ + 8 * dt + j, VP + 16 * dt + 2 * j) for j in range(8)], f13 + 2 * dt + 4, f13 + 2 * dt + 5)
    def maxops(t):
        sb = VS + 16 * (t & 1)
        ops = []
        for j in range(8):
            a = sb + 2 * j
            if t == 0 and j == 0: ops.append(vop(f"v_max_f32 v6, v{a}, v{a+1}", ["v6"], [f"v{a}", f"v{a+1}"]))
            else: ops.append(vop(f"v_max3_f32 v6, v6, v{a}, v{a+1}", ["v6"], ["v6", f"v{a}", f"v{a+1}"]))
        if t == 15:
            ops.append(vop("v_mov_b32 v18, v6", ["v18"], ["v6"]))
            ops.append(vop("v_permlane32_swap_b32 v18, v6", ["v18", "v6"], ["v18", "v6"]))
            ops.append(vop("v_max_f32 v6, v18, v6", ["v6"], ["v18", "v6"]))
        nm, po = 30 + (t & 1), 30 + ((t + 1) & 1)
        ops.append(vop(f"v_mul_f32 v18, s{sNC}, v6", ["v18"], ["v6"]))
        ops.append(vop(f"v_floor_f32 v{nm}, v18", [f"v{nm}"], ["v18"]))
        return ops
    def resc(t):
        nm, po = 30 + (t & 1), 30 + ((t + 1) & 1)
        ops = []
        if t > 0:
            ops.append(vop(f"v_sub_f32 v18, v{nm}, v{po}", ["v18"], [f"v{nm}", f"v{po}"]))
            ops.append(vop("v_cvt_i32_f32 v18, v18", ["v18"], ["v18"]))
            ops.append(vop("v_ldexp_f32 v7, v7, v18", ["v7"], ["v7", "v18"]))
        if t < 15:
            ops.append(vop(f"v_accvgpr_write_b32 a{HIST+t}, v{nm}", [f"a{HIST+t}"], [f"v{nm}"]))
        return ops
    def pops(t):
        sb = VS + 16 * (t & 1); nm = 30 + (t & 1)
        ops = []
        for h in range(4):
            e = range(sb + 4 * h, sb + 4 * h + 4)
            for a in e: ops.append(vop(f"v_fma_f32 v{a}, v{a}, s{sC}, v{nm}", [f"v{a}"], [f"v{a}", f"v{nm}"]))
            for a in e: ops.append(lambda a=a: P.trans(f"v_exp_f32 v{a}, v{a}", [f"v{a}"], [f"v{a}"]))
            if h > 0: ops += post(t, h - 1)
        ops += post(t, 3)
        return ops
    def post(t, h):
        sb = VS + 16 * (t & 1)
        ops = []
        for j in (2 * h, 2 * h + 1):
            a = sb + 2 * j
            ops.append(cvt(VP + 8 * t + j, a))
            if t == 0 and j == 0:
                ops.append(vop(f"v_add_f32 v7, v{a}, v{a+1}", ["v7"], [f"v{a}", f"v{a+1}"]))
            else:
                ops.append(vop(f"v_add_f32 v7, v7, v{a}", ["v7"], ["v7", f"v{a}"]))
                ops.append(vop(f"v_add_f32 v7, v7, v{a+1}", ["v7"], ["v7", f"v{a+1}"]))
        return ops
    for t in range(15):
        f = first[Ki(t + 1)]
        spread(maxops(t) + resc(t) + pops(t), f + 2, f + 15)
    def corr(t):
        ops = [accrd(19, HIST + t),
               vop("v_sub_f32 v19, v19, v31", ["v19"], ["v19", "v31"]),
               vop("v_cvt_u32_f32 v19, v19", ["v19"], ["v19"]),
               vop("v_min_u32 v19, 0xff, v19", ["v19"], ["v19"]),
               vop("v_mul_u32_u24 v19, 0x800080, v19", ["v19"], ["v19"])]
        for j in range(8):
            a = VP + 8 * t + j
            ops.append(vop(f"v_pk_sub_u16 v{a}, v{a}, v19 clamp", [f"v{a}"], [f"v{a}", "v19"]))
        return ops
    fv0 = first[Vi(0, 0)]
    pre[fv0] += maxops(15) + corr(0)
    if not cfg.cst: pre[fv0].append(lambda: stamp(P, cfg, 3))
    last = resc(15) + pops(15)
    for t in range(1, 15):
        spread(corr(t), fv0 + 4 * (t - 1), fv0 + 4 * (t - 1) + 2)
    spread(last, fv0 + 1, fv0 + 54)
    fin = [vop("v_mov_b32 v18, v7", ["v18"], ["v7"]),
           vop("v_permlane32_swap_b32 v18, v7", ["v18", "v7"], ["v18", "v7"]),
           vop("v_add_f32 v7, v18, v7", ["v7"], ["v18", "v7"]),
           lambda: P.trans("v_rcp_f32 v6, v7", ["v6"], ["v7"])]
    spread(fin, fv0 + 57, fv0 + 60)
    def onorm(q, dt):
        ab = VQ + 32 * (q & 1) + 16 * dt; fb = OFR[q] + 8 * dt
        ops = []
        for j in range(8):
            a = ab + 2 * j
            ops.append(vop(f"v_mul_f32 v{a}, v{a}, v6", [f"v{a}"], [f"v{a}", "v6"]))
            ops.append(vop(f"v_mul_f32 v{a+1}, v{a+1}, v6", [f"v{a+1}"], [f"v{a+1}", "v6"]))
            ops.append(cvt(fb + j, a))
        return ops
    for q in range(3):
        f = first[Vi(q + 1, 0)]
        spread(onorm(q, 0) + onorm(q, 1), f + 2, f + 14)
    f33 = first[Vi(3, 3)]
    spread(onorm(3, 0), f33 + 10, f33 + 14)
    fo3 = first[Oi(cfg.nin, 0)]
    spread(onorm(3, 1), fo3 + 1, fo3 + (3 if cfg.nin == 3 else 6))
    if cfg.otouch_at != -1:
        f = first[cfg.otouch_at] if cfg.otouch_at != 'start' else -1
        def otouch(pol=cfg.otpol):
            S(f"s_mul_i32 s{sOff}, s{sB}, {32*896}"); S(f"s_mul_i32 s3, s{sWave}, {75*128}"); S(f"s_add_u32 s{sOff}, s{sOff}, s3")
            V("v_lshlrev_b32 v19, 7, v0", ["v19"], ["v0"])
            P.vmem(f"buffer_load_dword a64, v19, {srd(SRD_O)}, s{sOff} offen{pol}", ["a64"], ["v19"])
            V(f"v_min_u32 v18, {10*128}, v19", ["v18"], ["v19"])
            S(f"s_add_u32 s{sOff}, s{sOff}, 8192")
            P.vmem(f"buffer_load_dword a65, v18, {srd(SRD_O)}, s{sOff} offen{pol}", ["a65"], ["v18"])
            vm["n"] += 2
        for it2, pol2 in cfg.ot2: fill[first[it2] + 1].append(lambda pol2=pol2: otouch(pol2))
        if f >= 0: f += 10
        if cfg.otl:
            def cond(bb):
                S(f"s_cmp_lg_u32 s{sB}, {bb}"); S(f"s_cbranch_scc1 L_ot{bb}")
                otouch(); vm["n"] -= 2
                P.lab(f"L_ot{bb}")
            for bb, it in enumerate(cfg.otl): fill[first[it] + cfg.otd].append(lambda bb=bb: cond(bb))
        else: fill[f].append(otouch)
    if cfg.xdir:
        for c in range(cfg.xpre, 7):
            f = first[Qi(cfg.xstep * (c - cfg.xpre))]
            fill[f + 1].append(xcol)
            for x in range(4): fill[f + 2 + 2 * x].append(lambda c=c, x=x: xload(c, x))
        for i in range(14):
            pre[first[Qi(i)]].append(lambda i=i: P.raw(f"s_waitcnt vmcnt({vm['n'] - xidx[(i // 2, 2 * (i & 1) + 1)]})", "wait"))
    def lead(lbl):
        S(f"s_and_b32 s3, s{sB}, 3"); S(f"s_lshl_b32 s3, s3, 2"); S(f"s_add_u32 s3, s3, 16")
        S(f"s_lshl_b32 s20, s{sWave}, 4"); S(f"s_add_u32 s20, s20, s{sH}")
        S(f"s_cmp_lg_u32 s20, s3"); S(f"s_cbranch_scc1 {lbl}")
    def clear():
        lead("L_nc")
        V("v_lshlrev_b32 v19, 4, v0", ["v19"], ["v0"])
        V("v_mov_b32 v32, 0", ["v32"])
        for i in range(2):
            P.vmem(f"buffer_store_dwordx4 v[32:35], v19, {srd(SRD_F)}, 0 offen offset:{1024*i} sc1", [], ["v32", "v19"])
        P.lab("L_nc")
    def report():
        lead("L_nr")
        tok_off(P)
        V(f"v_lshl_add_u32 v19, v0, 8, s3", ["v19"], ["v0"])
        P.raw("s_waitcnt vmcnt(0)", "wait")
        P.vmem(f"buffer_store_dword v4, v19, {srd(SRD_D)}, 0 offen sc1", [], ["v4", "v19"])
        P.lab("L_nr")
    fill[-1].append(clear)
    fill[first[cfg.tok_at]].append(report)
    if cfg.nin: pre[first[Oi(0, 0)]].append(lambda: P.raw("s_waitcnt vmcnt(0)", "wait"))
    stored = {}
    def epi(n, nt):
        af, ab = oacc(n, nt)
        tb = VP + 24 * ((2 * n + nt) % 4)
        ops = []
        for j in range(2):
            if af == "a":
                for x in range(8): ops.append(accrd(tb + 8 * j + x, ab + 8 * j + x))
                dd = tb + 16 + 4 * j; src = tb + 8 * j
            else:
                dd = VP + 64 + 8 * ((2 * n + nt) % 8) + 4 * j; src = ab + 8 * j
            for x in range(4): ops.append(cvt(dd + x, src + 2 * x))
            def st_(dd=dd, j=j):
                if not cfg.nostore: P.vmem(f"buffer_store_dwordx4 v[{dd}:{dd+3}], v5, {srd(SRD_P)}, s{sOff} offen offset:{(2*nt+j)*128} sc1",
                       [], R("v", dd, 4) + ["v5"], wide_store=R("v", dd, 4))
                vm["n"] += 1; stored[n] = vm["n"]
            ops.append(st_)
        return ops
    def epi_off():
        S(f"s_mul_i32 s{sOff}, s{sRotO}, 12288"); S(f"s_add_u32 s{sOff}, s{sOff}, s{sOffW}")
        S(f"s_add_u32 s{sRotO}, s{sRotO}, 1"); S(f"s_cmp_eq_u32 s{sRotO}, 7"); S(f"s_cselect_b32 s{sRotO}, 0, s{sRotO}")
    def flagsetup():
        S(f"s_lshl_b32 s3, s{sH}, 7")
        V(f"v_lshl_add_u32 v19, v0, 4, s3", ["v19"], ["v0"])
        V(f"v_cmp_gt_u32 s[{sOffX}:{sOffX+1}], 8, v0", [f"s{sOffX}"], ["v0"])
        V(f"v_cndmask_b32 v19, v2, v19, s[{sOffX}:{sOffX+1}]", ["v19"], ["v2", "v19", f"s{sOffX}"])
        V(f"v_lshl_add_u32 v30, v0, 4, v2", ["v30"], ["v0", "v2"])
    def flag(k):
        c = cfg.ck[k]
        assert k == 0 or cfg.noflag or vm[k - 1] <= stored[c]
        P.raw(f"s_waitcnt vmcnt({vm['n'] - stored[c]})", "wait")
        if k == len(cfg.ck) - 1 and not cfg.cst: stamp(P, cfg, 5)
        if cfg.noflag: return
        V(f"v_mov_b32 v8, {k+1}", ["v8"])
        P.ds(f"ds_add_rtn_u32 v18, v30, v4 offset:{1024+4*k}", ["v18"], ["v30", "v4"])
    def flag2(k):
        if cfg.noflag: return
        V(f"v_cmp_eq_u32 s[{sOffX}:{sOffX+1}], 2, v18", [f"s{sOffX}"], ["v18"])
        V(f"v_cndmask_b32 v18, v2, v19, s[{sOffX}:{sOffX+1}]", ["v18"], ["v2", "v19", f"s{sOffX}"])
        P.vmem(f"buffer_store_dwordx4 v[8:11], v18, {srd(SRD_F)}, 0 offen sc1", [], ["v18", "v8"], wide_store=R("v", 8, 4))
        vm["n"] += 1; vm[k] = vm["n"]
    fill[fo3 + 7].append(flagsetup)
    tend = {}
    for i in range(fo3, N): tend[(M[i]["item"][2], M[i]["nt"])] = i
    w = 4 if cfg.nin else 2
    lastfill = fo3 + 7
    for n in range(7):
        for nt in range(2):
            g0 = max(tend[(n, nt)] + 2, lastfill + 1); g1 = g0 + w - 1
            ops = ([epi_off] if nt == 0 else []) + epi(n, nt)
            if g1 > N - 1: g1 = N - 1
            if g0 > N - 1: g0 = N - 1
            spread(ops, g0, g1); lastfill = g1
    for k, c in enumerate(cfg.ck):
        at = min(fo3 + nl * (c + 1 + cfg.cklag) + 1, N - 1)
        fill[at].append(lambda k=k: flag(k))
        fill[min(at + 3, N - 1)].append(lambda k=k: flag2(k))
    if cfg.cst:
        for k, it in enumerate(cfg.cst): pre[first[it]].append(lambda k=k: stamp(P, cfg, 1 + k))
    else:
        pre[first[Ki(0)]].append(lambda: stamp(P, cfg, 2))
        pre[fo3].append(lambda: stamp(P, cfg, 4))

    stubs = Prog(); P.tail_blocks.append(stubs)
    seen = {12: 0, 1036: 0}
    chk = {}
    for it in corder:
        w, e = endidx[it]
        if e > seen[w] and not cfg.nosync:
            chk[it] = (w, e); seen[w] = e
    def flagread(it): P.ds(f"ds_read_b32 v3, v2 offset:{chk[it][0]}", ["v3"], ["v2"])
    def cmp(it): V(f"v_cmp_le_u32 vcc, {chk[it][1]}, v3", ["vcc"], ["v3"])
    def branch(it):
        nm = lname(it)
        S(f"s_cbranch_vccz L_cs{nm}")
        P.lab(f"L_cb{nm}")
        stubs.lab(f"L_cs{nm}")
        stubs.raw(f"ds_read_b32 v3, v2 offset:{chk[it][0]}"); stubs.raw("s_waitcnt lgkmcnt(0)")
        stubs.raw(f"v_cmp_le_u32 vcc, {chk[it][1]}, v3"); stubs.raw(f"s_cbranch_vccz L_cs{nm}"); stubs.raw(f"s_branch L_cb{nm}")
    ci = {it: i for i, it in enumerate(corder)}
    xq = []
    def starts(j): return j < N and first[M[j]["item"]] == j
    def reads(j):
        m = M[j]; it = m["item"]
        if first[it] == j:
            if 0 < ci[it] <= lastrel + 1: P.ds("ds_add_u32 v1, v4", [], ["v1", "v4"])
            if it in chk: branch(it)
            if j == 0 and cfg.s1at == 'first' and not cfg.cst: stamp(P, cfg, 1)
            if it[0] == 'Q' and it[1] % 2 == 0 and not cfg.xdir:
                for s in range(4): xq.append((16 * ((it[1] // 2) & 1) + 4 * s, 24 + s, loc[(it, 'x')]))
        if xq: rd128(*xq.pop(0))
        m["rd"](RING + 4 * (j % 8))
        if starts(j + 4) and M[j + 4]["item"] in chk: flagread(M[j + 4]["item"])
        if starts(j + 1) and M[j + 1]["item"] in chk: cmp(M[j + 1]["item"])
    for op in fill[-1]: op()
    if not cfg.tick: P.raw("s_barrier", "salu")
    if corder[0] in chk:
        flagread(corder[0]); cmp(corder[0])
    for j in range(cfg.PD): reads(j)
    for i, m in enumerate(M):
        for op in pre[i]: op()
        if cfg.pairwait and i % 2 == 0 and i + 1 < N:
            P._need(R("a", RING + 4 * ((i + 1) % 8), 4))
        P.mfma(m["d"], ("a", RING + 4 * (i % 8)), m["b"], m["c"])
        if i + cfg.PD < N: reads(i + cfg.PD)
        for op in fill[i]: op()

def red_setup(P, cfg):
    S, V = P.salu, P.valu
    S(f"s_mul_i32 s3, s{sGrp}, {PART*16}")
    mk_srd(P, SRD_G, sWs, "s3", PART * 16)
    mk_srd(P, SRD_OUT, sOut, None, 8 * 96 * 896 * 2)
    V("v_lshrrev_b32 v41, 4, v0", ["v41"], ["v0"])
    V(f"v_mul_u32_u24 v40, {PART}, v41", ["v40"], ["v41"])
    V("v_and_b32 v42, 15, v0", ["v42"], ["v0"])
    V("v_lshl_add_u32 v40, v42, 4, v40", ["v40"], ["v42", "v40"])
    V("v_bfe_u32 v44, v0, 1, 2", ["v44"], ["v0"])
    V("v_mul_u32_u24 v43, 1792, v44", ["v43"], ["v44"])
    V("v_bfe_u32 v45, v0, 3, 1", ["v45"], ["v0"])
    V("v_lshl_add_u32 v43, v45, 5, v43", ["v43"], ["v45", "v43"])
    V("v_and_b32 v46, 1, v0", ["v46"], ["v0"])
    V("v_lshl_add_u32 v43, v46, 4, v43", ["v43"], ["v46", "v43"])
    V("v_lshl_add_u32 v43, v41, 3, v43", ["v43"], ["v41", "v43"])
    V("v_lshlrev_b32 v46, 4, v46", ["v46"], ["v46"])
    V("v_mov_b32 v47, 0x3f80", ["v47"])
    V("v_lshlrev_b32 v46, v46, v47", ["v46"], ["v46", "v47"])
    V("v_bfe_u32 v47, v0, 1, 3", ["v47"], ["v0"])
    for x in range(4):
        V(f"v_cmp_eq_u32 vcc, {x}, v47", ["vcc"], ["v47"])
        V(f"v_cndmask_b32 v{48+x}, 0, v46, vcc", [f"v{48+x}"], ["v46", "vcc"])
    V("v_lshlrev_b32 v52, 7, v42", ["v52"], ["v42"])
    S(f"s_mul_i32 s{sT3}, s{sB}, {96*1792}"); S(f"s_mul_i32 s3, s{sWhich}, 896"); S(f"s_add_u32 s{sT3}, s{sT3}, s3")
    for i in range(3):
        S(f"s_mul_i32 s3, s{sH}, 3"); S(f"s_add_u32 s3, s3, {i}")
        S(f"s_and_b32 s{90+i}, s3, 1"); S(f"s_lshl_b32 s{90+i}, s{90+i}, 6")
        S(f"s_lshr_b32 s3, s3, 1"); S(f"s_mul_i32 s3, s3, 7168")
        S(f"s_add_u32 s{90+i}, s{90+i}, s3"); S(f"s_add_u32 s{90+i}, s{90+i}, s{sT3}")
    S(f"s_mul_i32 s{sOffW}, s{sH}, 768")

def flag_read(P, k):
    P.raw(f"buffer_load_dword v55, v52, {srd(SRD_F)}, 0 offen sc1", "vmem")

def reduce4(P, cfg):
    S, V = P.salu, P.valu
    def col(n, dst):
        S(f"s_add_u32 s{dst}, s{sRotO}, {n}"); S(f"s_sub_u32 s3, s{dst}, 7"); S(f"s_cselect_b32 s{dst}, s{dst}, s3")
    lo = 0; rr = 0
    for k, c in enumerate(cfg.ck):
        steps = list(range(lo, c + 1)); lo = c + 1
        assert len(steps) <= 4
        if cfg.own:
            P.lab(f"L_own{k}")
            P.raw(f"ds_read_b32 v55, v2 offset:{1024+4*k}", "other"); P.raw("s_waitcnt lgkmcnt(0)", "wait")
            V(f"v_cmp_gt_u32 vcc, 3, v55", ["vcc"], ["v55"])
            S(f"s_cbranch_vccnz L_own{k}")
        P.lab(f"L_fl{k}")
        flag_read(P, k); P.raw("s_waitcnt vmcnt(0)", "wait")
        V(f"v_cmp_ge_u32 vcc, {k}, v55", ["vcc"], ["v55"])
        S(f"s_cbranch_vccz L_flok{k}")
        if cfg.pollgap:
            S(f"s_mov_b32 s3, {cfg.pollgap}")
            P.lab(f"L_fg{k}")
            P.raw("s_nop 15", "other"); S("s_sub_u32 s3, s3, 1"); S("s_cmp_lg_u32 s3, 0"); S(f"s_cbranch_scc1 L_fg{k}")
        S(f"s_branch L_fl{k}")
        P.lab(f"L_flok{k}")
        if not cfg.lst: stamp(P, cfg, 5 if k == 0 else 6)
        regs = []
        for n in steps:
            col(n, sT1)
            S(f"s_mul_i32 s{sOff}, s{sT1}, 12288"); S(f"s_add_u32 s{sOff}, s{sOff}, s{sOffW}")
            for g in range(4):
                for i in range(3):
                    r = 64 + 4 * (rr % 48); rr += 1
                    P.raw(f"buffer_load_dwordx4 v[{r}:{r+3}], v40, {srd(SRD_G)}, s{sOff} offen offset:{256*i} sc1", "vmem")
                    regs.append(r)
                if g < 3: S(f"s_add_u32 s{sOff}, s{sOff}, {4*PART}")
        behind = 0
        nst = 0
        for si, n in enumerate(steps):
            ab = 8 + 12 * (si & 1)
            for g in range(4):
                for i in range(3):
                    x = 12 * si + 3 * g + i
                    r = regs[x]; acc = ab + 4 * i
                    P.raw(f"s_waitcnt vmcnt({len(regs) - 1 - x + behind + nst})", "wait")
                    P.raw(f"v_mfma_f32_16x16x32_bf16 v[{acc}:{acc+3}], v[48:51], v[{r}:{r+3}], {'0' if g == 0 else f'v[{acc}:{acc+3}]'}", "other")
            col(n, sT1)
            S(f"s_lshl_b32 s{sT1}, s{sT1}, 7")
            P.raw("s_nop 4", "other")
            S("s_mov_b32 exec_hi, 0")
            for i in range(3):
                acc = ab + 4 * i; d = 56 + 2 * i
                if i == 2: P.raw("s_nop 1", "other")
                P.raw(f"v_cvt_pk_bf16_f32 v{d}, v{acc}, v{acc+1}", "other")
                P.raw(f"v_cvt_pk_bf16_f32 v{d+1}, v{acc+2}, v{acc+3}", "other")
                S(f"s_add_u32 s3, s{90+i}, s{sT1}")
                P.raw(f"buffer_store_dwordx2 v[{d}:{d+1}], v43, {srd(SRD_OUT)}, s3 offen", "vmem")
                nst += 1
            S("s_mov_b32 exec_hi, -1")

def write_stamps(P, cfg):
    if not cfg.stamps: return
    S, V = P.salu, P.valu
    if cfg.spin:
        n, k, w = cfg.spin
        P.raw("s_waitcnt vmcnt(0)", "wait")
        stamp(P, cfg, 7)
        P.raw("s_waitcnt lgkmcnt(0)", "wait")
        S(f"s_cmp_lg_u32 s{sWave}, {w}"); S("s_cbranch_scc1 L_end")
        S(f"s_add_u32 s20, s{sStamp + 2 * (k or 0)}, {n}")
        P.lab("L_spin")
        P.raw("s_nop 15", "other"); P.raw("s_nop 15", "other")
        P.raw("s_memrealtime s[22:23]", "salu"); P.raw("s_waitcnt lgkmcnt(0)", "wait")
        S("s_sub_u32 s3, s22, s20"); S("s_cmp_lt_i32 s3, 0"); S("s_cbranch_scc1 L_spin")
        return
    P.raw("s_waitcnt vmcnt(0)", "wait")
    stamp(P, cfg, 7)
    P.raw("s_waitcnt lgkmcnt(0)", "wait")
    S(f"s_cmp_eq_u32 s{sWave}, 1"); S("s_cbranch_scc1 L_end")
    S(f"s_cmp_eq_u32 s{sWave}, 2"); S("s_cbranch_scc1 L_end")
    S(f"s_add_u32 s{sWs}, s{sWs}, 0x8000000"); S(f"s_addc_u32 s{sWs+1}, s{sWs+1}, 0")
    S(f"s_lshl_b32 s3, s2, 7"); S(f"s_and_b32 s{sT1}, s{sWave}, 1"); S(f"s_lshl_b32 s{sT1}, s{sT1}, 6"); S(f"s_add_u32 s3, s3, s{sT1}")
    V("v_mov_b32 v6, s3", ["v6"])
    for r in range(16): V(f"v_mov_b32 v{8+r}, s{sStamp+r}", [f"v{8+r}"])
    for k in range(4):
        P.raw(f"global_store_dwordx4 v6, v[{8+4*k}:{11+4*k}], s[{sWs}:{sWs+1}] offset:{16*k}", "vmem")

def gen(cfg, verbose=False):
    corder = cons_order(cfg)
    ci = {it: i for i, it in enumerate(corder)}
    order = issue_order(cfg)
    assert sorted(citem(x) for x in order if x[0] not in 'TR') == sorted(corder)
    assert len(cfg.ck) <= 3
    loc, need = alloc(order, ci, 0 if cfg.xdir else cfg.nxb)
    if verbose:
        print(" ".join(f"{lname(it)}@{loc.get((citem(it),'m'),-UNIT)//UNIT}<{lname(corder[need[it]]) if need[it]>=0 else '-'}" for it in order))
    lastrel = max(need.values())
    assert lastrel + 1 <= ci[Oi(cfg.nin, 6)]
    P = Prog()
    prologue(P, cfg)
    def bd():
        red_setup(P, cfg); return 0
    endidx = loader(P, cfg, order, loc, need, bd)
    if not cfg.nored: reduce4(P, cfg)
    P.salu("s_branch L_fin")
    P.lab("L_cons")
    consumer(P, cfg, corder, loc, endidx, lastrel)
    P.lab("L_fin")
    write_stamps(P, cfg)
    P.lab("L_end")
    P.raw("s_endpgm", "salu")
    P.finalize()
    body = P.text()
    for Q in P.tail_blocks:
        Q.finalize(); body += "\n" + Q.text()
    hdr = [f"; fused attention blocks A|B: one workgroup per (block, batch, head); waves 0-2 compute, wave 3 streams",
           "; @launch grid=(256,1,1) block=(256,1,1) lds=163840",
           '.amdgcn_target "amdgcn-amd-amdhsa--gfx950"', ".text", f".globl {NAME}_kernel", ".p2align 8",
           f".type {NAME}_kernel,@function", f"{NAME}_kernel:"]
    ftr = ["  s_endpgm", "L_codeend:", '.section .rodata,"a"', ".p2align 6", f".amdhsa_kernel {NAME}_kernel",
           "  .amdhsa_next_free_vgpr 512", "  .amdhsa_next_free_sgpr 101", "  .amdhsa_accum_offset 256",
           "  .amdhsa_group_segment_fixed_size 0", "  .amdhsa_kernarg_size 104", "  .amdhsa_user_sgpr_count 2",
           "  .amdhsa_user_sgpr_kernarg_segment_ptr 1", "  .amdhsa_system_sgpr_workgroup_id_x 1", ".end_amdhsa_kernel"]
    return "\n".join(hdr) + "\n" + body + "\n" + "\n".join(ftr) + "\n", P

if __name__ == "__main__":
    out = sys.argv[1]
    kw = {}
    for a in sys.argv[2:]:
        k, v = a.split("=", 1)
        kw[k] = eval(v)
    txt, P = gen(Cfg(**kw), verbose=True)
    open(out, "w").write(txt)
    print(out, len(txt), "bytes", dict(P.stats()))
```

```python
import sys, math, struct, re
from asmlib import Prog, R, F
NAME = "concat_heads__mha_block_cached__gqa_block_cached__near_ridge"
UNIT = 4096
NU = 39
FLAG = NU * UNIT
PART = 86016

def f32bits(x):
    return struct.unpack("<I", struct.pack("<f", x))[0]

class Cfg:
    PD = 6
    D_kv = 48
    D_w = 32
    D_r = 48
    kfirst = 0
    nin = 0
    ck = (3, 6)
    lastsplit = True
    cklag = 2
    clr_at = 1
    arr_at = ('K', 2)
    arrmode = 'atomic'
    arrsh = 4
    tok_at = ('Q', 10)
    tokrd = ('K', 4)
    tokpol = " sc1"
    xdir = False
    xpre = 2
    xstep = 2
    code2 = False
    own = True
    otpol = ""
    jpol = ""
    otl = None
    otd = 1
    sched = None
    ot2 = ()
    sm = None
    smc = 0
    smr = (14, 44)
    opol0 = None
    nored = False
    nostore = False
    noflag = False
    kmix = ()
    oearly = ()
    o3early = 0
    stamps = False
    touch = False
    wtouch = True
    nxb = 4
    wpol = ""
    xpol = ""
    opol = ""
    tpol = " nt"
    otouch_at = ('Q', 2)
    slowstep = 8
    order = None
    nosync = False
    noload = False
    cyc = False
    ncode = 1
    pairwait = True
    early = False
    s1at = 'first'
    pollgap = 8
    rot2 = True
    plines = 1
    toreg = False
    earlybar = False
    cst = None
    lst = None
    spin = None
    kpol = " nt"
    vpol = " nt"
    outpol = ""
    tick = False
    tkpol = " sc0 sc1"
    tkst = False
    def __init__(self, **kw):
        for k, v in kw.items():
            assert hasattr(Cfg, k), k
            setattr(self, k, v)

sX, sK, sV, sWq, sWo, sWs, sOut, sDbg = 4, 6, 8, 10, 12, 14, 16, 18
SRD_K, SRD_V, SRD_W, SRD_X, SRD_O, SRD_P, SRD_G, SRD_OUT = 24, 28, 32, 36, 40, 44, 48, 52
SRD_F, SRD_D = 96, 28
FLG = 0x4000000
sRotO = 100
sB, sWhich, sH, sGrp, sWave = 56, 57, 58, 59, 60
sFlag, sPub, sOff, sRot, sOffW, sOffX, sC, sNC, sT0 = 61, 62, 63, 64, 65, 66, 67, 68, 69
sStamp = 70
sT1, sT2, sT3 = 86, 87, 88
sNeed, sCnt, sRet = 89, 93, 94
sPc = 22

def srd(n): return f"s[{n}:{n+3}]"

Qi = lambda i: ('Q', i)
Ki = lambda t: ('K', t)
Vi = lambda q, j: ('V', q, j)
Oi = lambda q, n: ('O', q, n)

def cons_order(cfg):
    o = [Qi(i) for i in range(14)] + [Ki(t) for t in range(16)]
    o += [Vi(0, j) for j in range(4)]
    for q in range(1, 4):
        o += [Vi(q, 0)] + ([Oi(q - 1, n) for n in range(7)] if q - 1 < cfg.nin else []) + [Vi(q, j) for j in range(1, 4)]
    o += [Oi(q, n) for n in range(7) for q in range(cfg.nin, 4)]
    return o

def expand(spec):
    while True:
        m = re.search(r"\(([^()]*)\)x(\d+)", spec)
        if not m: return spec
        spec = spec[:m.start()] + " ".join([m.group(1)] * int(m.group(2))) + spec[m.end():]

def parse_sched(cfg):
    toks = expand(cfg.sched).split()
    nr = sum(int(t[1:]) for t in toks if t[0] == 'R')
    rest = cons_order(cfg)[30:]
    o = []; q = r = c = 0; k = nr; nt = 0
    for t in toks:
        n = int(t[1:]) if len(t) > 1 else 1
        for _ in range(n):
            if t[0] == 'Q': o.append(Qi(q)); q += 1
            elif t[0] == 'K': o.append(Ki(k)); k += 1
            elif t[0] == 'R': o.append(('R', r)); r += 1
            elif t[0] == 'C': o.append(('C', c)); c += 1
            elif t[0] == 'v': o.append(rest.pop(0))
            elif t[0] in 'Tt': o.append(('T', nt, " nt" if t[0] == 'T' else "")); nt += 1
            else: assert 0, t
    assert q == 14 and k == 16 and c == nr, (q, k, c, nr)
    return o + rest

def issue_order(cfg):
    if cfg.order: return list(cfg.order)
    if cfg.sched: return parse_sched(cfg)
    o = [Ki(t) for t in range(cfg.kfirst)]
    nk = cfg.kfirst
    mix = dict(cfg.kmix)
    for i in range(14):
        o.append(Qi(i))
        for _ in range(mix.get(i, 0)):
            o.append(Ki(nk)); nk += 1
    o += [Ki(t) for t in range(nk, 16)]
    rest = cons_order(cfg)[30:]
    fin = rest[rest.index(Vi(3, 3)) + 1:]
    for at, cnt in cfg.oearly:
        e = fin[:cnt]; fin = fin[cnt:]
        rest = [x for x in rest if x not in e]
        p = rest.index(at) + 1
        rest = rest[:p] + e + rest[p:]
    return o + rest

def parts(it, nxb):
    if it[0] == 'Q': return ([('x', 3)] if it[1] % 2 == 0 and nxb else []) + [('m', 4)]
    if it[0] == 'O': return [('m', 2)]
    if it[0] in 'TPJWR': return []
    return [('m', 4)]

def citem(it): return Ki(it[1]) if it[0] == 'C' else it

def alloc(order, ci, nxb):
    occ = [-1] * NU
    loc, need = {}, {}
    issued = set(); done = set()
    for it0 in order:
        it = citem(it0)
        p = -1
        for nm, n in parts(it, nxb):
            best = None
            for s in (range(NU - n + 1) if nm != 'x' else [NU - 3 * (k + 1) for k in range(nxb)]):
                if nm != 'x' and Qi(12) not in done and s + n > NU - 3 * nxb: continue
                seg = occ[s:s + n]
                cross = (s * UNIT) // 65536 != ((s + n) * UNIT - 1) // 65536
                key = (max(seg), cross, sum(max(seg) - x for x in seg), (s % 4 != 0) if n == 4 else (-s if nm == 'x' else s % 2), s)
                if best is None or key < best[0]: best = (key, s)
            s = best[1]
            p = max(p, max(occ[s:s + n]))
            for u in range(s, s + n): occ[u] = ci[it]
            loc[(it, nm)] = s * UNIT
        need[it0] = p
        assert all(j in issued for j in range(p + 1)), (it, p)
        if it in ci: issued.add(ci[it])
        done.add(it)
    return loc, need

STASH = [("v", 64), ("v", 128), ("v", 192), ("a", 0), ("a", 64), ("a", 128), ("a", 192)]

def stamp(P, cfg, i):
    if cfg.stamps:
        P.raw(f"{'s_memtime' if cfg.cyc else 's_memrealtime'} s[{sStamp+2*i}:{sStamp+2*i+1}]", "salu")

def decode(P, cfg):
    S = P.salu
    S(f"s_bfe_u32 s{sWhich}, s2, 0x10002")
    S(f"s_bfe_u32 s{sB}, s2, 0x30003")
    S(f"s_and_b32 s{sH}, s2, 3"); S(f"s_lshl_b32 s{sH}, s{sH}, 2")
    S(f"s_lshr_b32 s3, s2, 6"); S(f"s_add_u32 s{sH}, s{sH}, s3")
    S(f"s_lshl_b32 s{sGrp}, s{sWhich}, 3"); S(f"s_add_u32 s{sGrp}, s{sGrp}, s{sB}")
    if cfg.rot2:
        S(f"s_lshl_b32 s3, s3, 1"); S(f"s_add_u32 s{sRot}, s{sB}, s3")
        S(f"s_sub_u32 s3, s{sRot}, 7"); S(f"s_cselect_b32 s{sRot}, s{sRot}, s3")
    else:
        S(f"s_cmp_eq_u32 s{sB}, 7"); S(f"s_cselect_b32 s{sRot}, 0, s{sB}")
    S(f"s_cmp_eq_u32 s{sB}, 7"); S(f"s_cselect_b32 s{sRotO}, 0, s{sB}")
    S(f"s_lshl_b32 s3, s{sB}, 4"); S(f"s_add_u32 s3, s3, s{sH}"); S(f"s_lshl_b32 s{sT0}, s3, 18")

def ptrs(P, src):
    S = P.salu
    S(f"s_bfe_u32 s3, {src}, 0x10002")
    S(f"s_mul_i32 s3, s3, 40")
    S("s_add_u32 s20, s0, s3"); S("s_addc_u32 s21, s1, 0")
    S(f"s_load_dwordx8 s[4:11], s[20:21], 0")
    S(f"s_load_dwordx2 s[12:13], s[20:21], 32")

sTk = 87
def prologue(P, cfg):
    S = P.salu
    S("s_cmp_ge_u32 s2, 256"); S("s_cbranch_scc1 L_end")
    stamp(P, cfg, 0)
    if cfg.tick:
        S(f"s_load_dwordx4 s[16:19], s[0:1], 80")
        S(f"s_load_dwordx2 s[14:15], s[0:1], 96")
        S(f"s_getreg_b32 s{sTk}, hwreg(HW_REG_XCC_ID, 0, 3)")
        P.valu("v_lshrrev_b32 v3, 6, v0", ["v3"], ["v0"])
        P.valu(f"v_readfirstlane_b32 s{sWave}, v3", [f"s{sWave}"], ["v3"])
    else:
        ptrs(P, "s2")
        S(f"s_load_dwordx2 s[14:15], s[0:1], 96")
        S(f"s_load_dwordx4 s[16:19], s[0:1], 80")
        P.valu("v_lshrrev_b32 v3, 6, v0", ["v3"], ["v0"])
        if cfg.ncode and not cfg.code2:
            S(f"s_getpc_b64 s[{sPc}:{sPc+1}]")
            P.lab("L_pc")
            S(f"s_bfe_u32 s3, s2, 0x30003"); S(f"s_lshl_b32 s3, s3, 13")
            P.valu("v_lshl_add_u32 v6, v0, 5, s3", ["v6"], ["v0"])
            for i in range(cfg.ncode):
                if i: P.valu("v_add_u32 v6, 0x10000, v6", ["v6"], ["v6"])
                P.valu("v_min_u32 v7, L_codeend-L_pc-4, v6", ["v7"], ["v6"])
                P.vmem(f"global_load_dword a{72+i}, v7, s[{sPc}:{sPc+1}]", [f"a{72+i}"], ["v7"])
        P.valu(f"v_readfirstlane_b32 s{sWave}, v3", [f"s{sWave}"], ["v3"])
        decode(P, cfg)
    P.valu("v_and_b32 v0, 63, v0", ["v0"], ["v0"])
    if cfg.tick:
        S(f"s_cmp_eq_u32 s{sWave}, 3"); S("s_cbranch_scc1 L_ld0")
        if cfg.ncode:
            S(f"s_getpc_b64 s[{sPc}:{sPc+1}]")
            P.lab("L_pc")
            S(f"s_sub_u32 s{sPc}, s{sPc}, L_pc-{NAME}_kernel"); S(f"s_subb_u32 s{sPc+1}, s{sPc+1}, 0")
            S("s_lshr_b32 s3, s2, 3"); S(f"s_cmp_eq_u32 s{sWave}, 1"); S("s_cselect_b32 s3, 0, s3")
            S(f"s_cmp_eq_u32 s{sWave}, 0"); S("s_cselect_b32 s20, 0, s2"); S("s_xor_b32 s3, s3, s20")
            S("s_and_b32 s3, s3, 7"); S("s_lshl_b32 s3, s3, 13")
            P.valu("v_lshl_add_u32 v6, v0, 7, s3", ["v6"], ["v0"])
            P.valu(f"v_min_u32 v7, L_codeend-{NAME}_kernel-4, v6", ["v7"], ["v6"])
            P.vmem(f"global_load_dword a72, v7, s[{sPc}:{sPc+1}]", ["a72"], ["v7"])
        S("s_branch L_cons")
        P.lab("L_ld0")
        S(f"s_bfe_u32 s3, s2, 0x20006"); S(f"s_lshl_b32 s3, s3, 3"); S(f"s_or_b32 s{sTk}, s{sTk}, s3")
        P.valu("v_mov_b32 v61, 1", ["v61"])
        S(f"s_mov_b32 s{sT3}, 0")
        ticket(P, cfg, True)
    ldsinit(P)
    if not cfg.tick:
        S(f"s_cmp_lg_u32 s{sWave}, 3"); S("s_cbranch_scc1 L_cons")

def ticket(P, cfg, first):
    S = P.salu
    S(f"s_lshl_b32 s3, s{sTk}, 3"); S("s_add_u32 s3, s3, 4")
    P.valu("v_mov_b32 v60, s3", ["v60"])
    if first: P.raw("s_waitcnt lgkmcnt(0)", "wait")
    S("s_mov_b64 exec, 1")
    P.vmem(f"global_atomic_add v62, v60, v61, s[{sDbg}:{sDbg+1}]{cfg.tkpol}", ["v62"], ["v60", "v61"])
    S("s_mov_b64 exec, -1")
    ptrs(P, f"s{sTk}")

def ldsinit(P):
    S = P.salu
    P.valu("v_lshlrev_b32 v2, 4, v0", ["v2"], ["v0"])
    P.valu(f"v_add_u32 v2, {FLAG}, v2", ["v2"], ["v2"])
    S(f"s_lshl_b32 s3, s{sWave}, 2")
    P.valu(f"v_add_u32 v1, s3, v2", ["v1"], ["v2"])
    P.valu(f"v_mov_b32 v2, {FLAG}", ["v2"])
    P.valu("v_mov_b32 v4, 0", ["v4"])
    P.ds("ds_write_b32 v1, v4", [], ["v1", "v4"])
    P.ds("ds_write_b32 v1, v4 offset:1024", [], ["v1", "v4"])

def mk_srd(P, dst, base, off, size):
    S = P.salu
    if off is None:
        S(f"s_mov_b32 s{dst}, s{base}"); S(f"s_mov_b32 s{dst+1}, s{base+1}")
    else:
        S(f"s_add_u32 s{dst}, s{base}, {off}"); S(f"s_addc_u32 s{dst+1}, s{base+1}, 0")
    S(f"s_mov_b32 s{dst+2}, {size}"); S(f"s_mov_b32 s{dst+3}, 0x20000")
def srd_w(P):
    P.salu(f"s_lshl_b32 s3, s{sH}, 9"); mk_srd(P, SRD_W, sWq, "s3", 447 * 8192 + 512)
def srd_x(P):
    P.salu(f"s_mul_i32 s3, s{sB}, 86016"); mk_srd(P, SRD_X, sX, "s3", 86016)
def srd_o(P):
    P.salu(f"s_mul_i32 s3, s{sH}, {256*896}"); mk_srd(P, SRD_O, sWo, "s3", 256 * 896)

def srd_f(P):
    P.salu(f"s_lshl_b32 s3, s{sGrp}, 11"); P.salu(f"s_add_u32 s3, s3, {FLG}"); mk_srd(P, SRD_F, sWs, "s3", 2048)
def tok_off(P):
    S = P.salu
    S(f"s_lshr_b32 s3, s{sB}, 2"); S(f"s_lshl_b32 s3, s3, 1"); S(f"s_add_u32 s3, s3, s{sWhich}"); S(f"s_lshl_b32 s3, s3, 2")
    S(f"s_and_b32 s20, s{sB}, 3"); S(f"s_add_u32 s3, s3, s20"); S(f"s_lshl_b32 s3, s3, 4")

def sm_list(cfg):
    if cfg.sm == 'a': return [128 * i for i in range(224)]
    if cfg.sm == 'b': return [64 * i for i in range(448)]
    return [256 * i + 124 for i in range(112)]
def sm_base(P, extra=None):
    S = P.salu
    S(f"s_mul_i32 s3, s{sH}, {256*896}"); S(f"s_mul_i32 s20, s{sB}, 28672"); S("s_add_u32 s3, s3, s20")
    if extra: S(f"s_mul_i32 s20, s{sWave}, {extra}"); S("s_add_u32 s3, s3, s20")
    S(f"s_add_u32 s22, s{sWo}, s3"); S(f"s_addc_u32 s23, s{sWo+1}, 0")
def sm_load(P, cfg, off):
    P.raw(f"s_load_dwordx2 s[20:21], s[22:23], {off}" if cfg.sm == 'c' else f"s_load_dword s20, s[22:23], {off}", "salu")

def lname(it): return "_".join(str(x) for x in it)

def loader(P, cfg, order, loc, need, before_drain=None):
    S, V = P.salu, P.valu
    P.lab("L_loader")
    P.ds_q = []
    V("v_lshrrev_b32 v5, 5, v0", ["v5"], ["v0"])
    V("v_and_b32 v6, 31, v0", ["v6"], ["v0"])
    V("v_lshlrev_b32 v7, 9, v5", ["v7"], ["v5"])
    for t in range(8):
        V(f"v_add_u32 v3, {2*t}, v5", ["v3"], ["v5"])
        V(f"v_xor_b32 v3, v3, v6", ["v3"], ["v3", "v6"])
        V(f"v_lshl_add_u32 v{8+t}, v3, 4, v7", [f"v{8+t}"], ["v3", "v7"])
    def lane_setup():
        for p in range(2):
            V(f"v_add_u32 v3, {2*p}, v5", ["v3"], ["v5"])
            V("v_lshlrev_b32 v3, 2, v3", ["v3"], ["v3"])
            V("v_xor_b32 v3, v3, v6", ["v3"], ["v3", "v6"])
            V("v_lshlrev_b32 v18, 13, v5", ["v18"], ["v5"])
            V(f"v_lshl_add_u32 v3, v3, 4, v18", ["v3"], ["v3", "v18"])
            V(f"v_add_u32 v{20+p}, {p*15360}, v3", [f"v{20+p}"], ["v3"])
            V(f"v_add_u32 v{22+p}, {(p+2)*15360}, v3", [f"v{22+p}"], ["v3"])
        V("v_lshrrev_b32 v36, 3, v0", ["v36"], ["v0"])
        V("v_mul_u32_u24 v37, 896, v36", ["v37"], ["v36"])
        V("v_and_b32 v38, 7, v0", ["v38"], ["v0"])
        V("v_lshrrev_b32 v35, 4, v0", ["v35"], ["v0"])
        for p in range(0 if cfg.xdir else 2):
            V(f"v_add_u32 v3, {4*p}, v35", ["v3"], ["v35"])
            V("v_xor_b32 v3, v3, v38", ["v3"], ["v3", "v38"])
            V("v_lshl_add_u32 v3, v3, 4, v37", ["v3"], ["v3", "v37"])
            V(f"v_add_u32 v{24+p}, {p*6144}, v3", [f"v{24+p}"], ["v3"])
            V(f"v_add_u32 v{26+p}, {(p+2)*6144}, v3", [f"v{26+p}"], ["v3"])
        V("v_and_b32 v3, 1, v35", ["v3"], ["v35"])
        V("v_lshlrev_b32 v3, 2, v3", ["v3"], ["v3"])
        V("v_xor_b32 v3, v3, v38", ["v3"], ["v3", "v38"])
        V("v_lshl_add_u32 v28, v3, 4, v37", ["v28"], ["v3", "v37"])
        V("v_lshlrev_b32 v36, 9, v36", ["v36"], ["v36"])
        V("v_lshl_add_u32 v16, v3, 4, v36", ["v16"], ["v3", "v36"])
        for j in range(1, 4):
            V(f"v_add_u32 v{28+j}, {j*6144}, v28", [f"v{28+j}"], ["v28"])
            V(f"v_add_u32 v{16+j}, {j*3072}, v16", [f"v{16+j}"], ["v16"])
    if cfg.tick:
        lane_setup()
        P.lab("L_tk")
        P.raw("s_waitcnt vmcnt(0) lgkmcnt(0)", "wait")
        V("v_readfirstlane_b32 s3, v62", ["s3"], ["v62"])
        S("s_cmp_lt_u32 s3, 8"); S("s_cbranch_scc0 L_tkx")
        T = Prog(); P.tail_blocks.append(T)
        T.lab("L_tkx")
        T.salu(f"s_add_u32 s{sT3}, s{sT3}, 1"); T.salu(f"s_cmp_ge_u32 s{sT3}, 32"); T.salu("s_cbranch_scc1 L_tky")
        T.salu(f"s_add_u32 s{sTk}, s{sTk}, 1"); T.salu(f"s_and_b32 s{sTk}, s{sTk}, 31")
        ticket(T, cfg, False)
        T.salu("s_branch L_tk")
        T.lab("L_tky")
        ptrs(T, "s2"); T.raw("s_waitcnt lgkmcnt(0)", "wait"); T.salu("s_branch L_tkz")
        S("s_lshl_b32 s2, s3, 3")
        S(f"s_and_b32 s3, s{sTk}, 7"); S("s_or_b32 s2, s2, s3")
        S(f"s_lshr_b32 s3, s{sTk}, 3"); S("s_lshl_b32 s3, s3, 6"); S("s_or_b32 s2, s2, s3")
        P.lab("L_tkz")
        if cfg.tkst: stamp(P, cfg, 1)
        V("v_mov_b32 v3, s2", ["v3"])
        P.ds("ds_write_b32 v2, v3 offset:2048", [], ["v2", "v3"])
        decode(P, cfg)
    else:
        P.raw("s_waitcnt lgkmcnt(0)", "wait")
    mk_srd(P, SRD_K, sK, f"s{sT0}", 262144)
    if cfg.early: stamp(P, cfg, 1)
    st = dict(c=0, done=0, pub=0, barrier=False, pre=False)
    ends = []
    cop = {}
    def crossed(done):
        e = [e for it, e in ends if e <= done]
        return max(e) if e else 0
    def publish(n):
        V(f"v_mov_b32 v4, {n}", ["v4"])
        P.ds("ds_max_i32 v1, v4", [], ["v1", "v4"])
        if cfg.sm: P.ds_q = []
    def need_barrier():
        if not st["barrier"]:
            P.lgkm0(); P.raw("s_barrier", "salu"); st["barrier"] = True
    def pollread(Q):
        Q.ds("ds_read_b96 v[32:34], v2", ["v32", "v33", "v34"], ["v2"])
        if cfg.sm: Q.ds_q = []
    def polluse(Q):
        Q.valu("v_min3_u32 v35, v32, v33, v34", ["v35"], ["v32", "v33", "v34"])
        Q.valu(f"v_readfirstlane_b32 s{sFlag}, v35", [f"s{sFlag}"], ["v35"])
    Q = Prog(); Q.lab("L_slow")
    def qpoll():
        pollread(Q)
        if cfg.sm: Q.raw("s_nop 15", "other")
        polluse(Q)
        Q.salu(f"s_cmp_gt_u32 s{sFlag}, s{sNeed}"); Q.salu("s_cbranch_scc1 L_slowret")
    qpoll()
    for n in range(56 - cfg.slowstep, -1, -cfg.slowstep):
        Q.raw(f"s_waitcnt vmcnt({n})", "wait")
        Q.salu(f"s_sub_u32 s3, s{sCnt}, {n}")
        Q.valu("v_mov_b32 v4, s3", ["v4"]); Q.ds("ds_max_i32 v1, v4", [], ["v1", "v4"])
        if n == 0: Q.lab("L_slowx")
        qpoll()
    Q.salu("s_branch L_slowx")
    Q.lab("L_slowret")
    Q.salu(f"s_setpc_b64 s[{sRet}:{sRet+1}]")
    P.tail_blocks.append(Q)
    def late_setup():
        mk_srd(P, SRD_V, sV, f"s{sT0}", 262144)
        srd_w(P); srd_o(P)
        if not cfg.xdir: srd_x(P)
        if not cfg.tick: lane_setup()
        S(f"s_mov_b32 s{sFlag}, 0")
        S(f"s_mov_b32 s{sT1}, s{sRot}")
        if cfg.sm:
            for r in (32, 33, 34): V(f"v_mov_b32 v{r}, 0", [f"v{r}"])
            sm_base(P)
    did_setup = False
    def group(lds, srdn, soff_setup, vregs, pol):
        S(f"s_mov_b32 m0, {lds}", ["m0"])
        soff_setup()
        for j, vr in enumerate(vregs):
            if cfg.toreg: P.vmem(f"buffer_load_dwordx4 a[{(st['c']%60)*4}:{(st['c']%60)*4+3}], v{vr}, {srd(srdn)}, s{sOff} offen offset:{j*1024}{pol}", [], [f"v{vr}"])
            elif not cfg.noload: P.vmem(f"buffer_load_dwordx4 v{vr}, {srd(srdn)}, s{sOff} offen offset:{j*1024}{pol} lds", [], [f"v{vr}"], dma=True)
            st["c"] += 1
    def after_group(D):
        if st["c"] - st["done"] > D:
            st["done"] = st["c"] - D
            P.raw(f"s_waitcnt vmcnt({D})", "wait")
            n = crossed(st["done"])
            if n > st["pub"]:
                need_barrier(); publish(st["done"]); st["pub"] = n
    known = {"k": -1}
    def eff_need(idx):
        p = need[order[idx]]
        if cfg.nosync or p <= known["k"]: return -1
        return p
    def prefetch_flags(idx):
        if idx + 1 < len(order) and eff_need(idx + 1) >= 0:
            need_barrier(); pollread(P); st["pre"] = True
    smq = {}
    if cfg.sm:
        L = sm_list(cfg)[3 * cfg.smc:]
        slots = [(i, g) for i in range(*cfg.smr) for g in range(2 if order[i][0] == 'O' else 4)]
        for j, off in enumerate(L): smq.setdefault(slots[j * len(slots) // len(L)], []).append(off)
    for idx, it in enumerate(order):
        if not did_setup and (it[0] != 'K' or idx >= 2):
            late_setup(); did_setup = True
        p = eff_need(idx)
        if p >= 0:
            assert st["pre"]; st["pre"] = False
            polluse(P)
            S(f"s_cmp_gt_u32 s{sFlag}, {p}"); S(f"s_cbranch_scc1 L_lb{lname(it)}")
            S(f"s_mov_b32 s{sNeed}, {p}"); S(f"s_mov_b32 s{sCnt}, {st['c']}")
            S(f"s_call_b64 s[{sRet}:{sRet+1}], L_slow")
            P.lab(f"L_lb{lname(it)}")
            P.ds_q = []
            known["k"] = p
        base = loc.get((citem(it), 'm'))
        def run(ng, srdn, so, vr, pol, D):
            for g in range(ng):
                if g == ng - 1: prefetch_flags(idx)
                group(base + g * 4096, srdn, lambda: so(g), vr(g), pol)
                for off in smq.get((idx, g), []): sm_load(P, cfg, off)
                if g == ng - 1: ends.append((it, st["c"]))
                after_group(D)
        if it[0] == 'T':
            prefetch_flags(idx)
            V("v_lshlrev_b32 v3, 7, v0", ["v3"], ["v0"])
            S(f"s_mul_i32 s{sOff}, s{sB}, {32*896}")
            for i in range(4):
                if i == 3: V(f"v_min_u32 v3, {31*128}, v3", ["v3"], ["v3"])
                P.vmem(f"buffer_load_dword v{56+i}, v3, {srd(SRD_O)}, s{sOff} offen{it[2] if len(it) > 2 else cfg.tpol}", [f"v{56+i}"], ["v3"])
                S(f"s_add_u32 s{sOff}, s{sOff}, 8192")
                st["c"] += 1
            after_group(cfg.D_w)
        elif it[0] == 'R':
            t = it[1]; rf, rb = STASH[t]
            for g in range(4):
                if g == 3: prefetch_flags(idx)
                S(f"s_mov_b32 s{sOff}, {t*16384 + g*4096}")
                for j in range(4):
                    r = rb + 16 * g + 4 * j; vr = 8 + 4 * (g & 1) + j
                    P.vmem(f"buffer_load_dwordx4 {F(rf, r, 4)}, v{vr}, {srd(SRD_K)}, s{sOff} offen offset:{j*1024} nt", R(rf, r, 4), [f"v{vr}"])
                    st["c"] += 1
                after_group(cfg.D_r)
            st[it] = st["c"]
        elif it[0] == 'C':
            t = it[1]; rf, rb = STASH[t]
            e = st[('R', t)]
            if st["done"] < e:
                st["done"] = e
                P.raw(f"s_waitcnt vmcnt({st['c'] - e})", "wait")
            need_barrier()
            for j in range(16):
                o = base + 1024 * j
                if st.get("seg") != o >> 16:
                    st["seg"] = o >> 16
                    V(f"v_lshlrev_b32 v39, 4, v0", ["v39"], ["v0"])
                    if o >> 16: V(f"v_add_u32 v39, {o & ~65535}, v39", ["v39"], ["v39"])
                if j == 12: prefetch_flags(idx)
                P.ds(f"ds_write_b128 v39, {F(rf, rb + 4 * j, 4)} offset:{o & 65535}", [], ["v39"] + R(rf, rb + 4 * j, 4))
            V(f"v_mov_b32 v4, {t+1}", ["v4"])
            P.ds("ds_max_i32 v1, v4 offset:1024", [], ["v1", "v4"])
            cop[Ki(t)] = t + 1
        elif it[0] == 'J':
            if not st.get("jreg"):
                V("v_lshlrev_b32 v39, 7, v0", ["v39"], ["v0"]); st["jreg"] = True
            for i in range(2):
                S(f"s_mov_b32 s{sOff}, {it[1]*16384 + i*8192}")
                P.vmem(f"buffer_load_dword a{80+(st['c']%64)}, v39, {srd(SRD_K)}, s{sOff} offen{cfg.jpol}", [f"a{80+(st['c']%64)}"], ["v39"])
                st["c"] += 1
            ends.append((it, st["c"]))
            after_group(cfg.D_w)
        elif it[0] == 'W':
            V("v_lshrrev_b32 v40, 2, v0", ["v40"], ["v0"]); V("v_lshlrev_b32 v40, 13, v40", ["v40"], ["v40"])
            V("v_and_b32 v41, 3, v0", ["v41"], ["v0"]); V("v_lshl_add_u32 v40, v41, 7, v40", ["v40"], ["v40", "v41"])
            S(f"s_mul_i32 s{sOff}, s{sB}, {56*8192}")
            for i in range(4):
                P.vmem(f"buffer_load_dword a{76+i}, v40, {srd(SRD_W)}, s{sOff} offen{cfg.jpol}", [f"a{76+i}"], ["v40"])
                S(f"s_add_u32 s{sOff}, s{sOff}, {16*8192}")
                st["c"] += 1
            ends.append((it, st["c"]))
            after_group(cfg.D_w)
        elif it[0] == 'P':
            V(f"v_and_b32 v3, {cfg.plines-1}, v0", ["v3"], ["v0"])
            V(f"v_mul_u32_u24 v3, {229376//cfg.plines}, v3", ["v3"], ["v3"])
            for i, sr in enumerate((SRD_K, SRD_V, SRD_O, SRD_V)):
                P.vmem(f"buffer_load_dword a{68+i}, v3, {srd(sr)}, 0 offen nt", [f"a{68+i}"], ["v3"])
                st["c"] += 1
            ends.append((it, st["c"]))
            after_group(cfg.D_kv)
        elif it[0] == 'Q':
            i = it[1]; D = cfg.D_w
            if i % 2 == 0:
                S(f"s_lshl_b32 s{sOffW}, s{sT1}, 19"); S(f"s_lshl_b32 s{sOffX}, s{sT1}, 7")
                S(f"s_add_u32 s{sT1}, s{sT1}, 1"); S(f"s_cmp_eq_u32 s{sT1}, 7"); S(f"s_cselect_b32 s{sT1}, 0, s{sT1}")
                for g in range(0 if cfg.xdir else 3):
                    group(loc[(it, 'x')] + g * 4096, SRD_X, lambda: S(f"s_add_u32 s{sOff}, s{sOffX}, {g*28672}"), [24, 25, 26, 27], cfg.xpol)
                    after_group(D)
            run(4, SRD_W, lambda g: S(f"s_add_u32 s{sOff}, s{sOffW}, {(i&1)*262144 + g*65536}"), lambda g: [20, 21, 22, 23], cfg.wpol, D)
        elif it[0] == 'K':
            t = it[1]
            run(4, SRD_K, lambda g: S(f"s_mov_b32 s{sOff}, {t*16384 + g*4096}"), lambda g: [8 + 4 * (g & 1) + j for j in range(4)], cfg.kpol, cfg.D_kv)
        elif it[0] == 'U':
            t = it[1]
            run(4, SRD_V, lambda g: S(f"s_mov_b32 s{sOff}, {t*16384 + g*4096}"), lambda g: [8 + 4 * (g & 1) + j for j in range(4)], " nt", cfg.D_kv)
            if t == 15: stamp(P, cfg, 3)
        elif it[0] == 'V':
            q, j = it[1], it[2]
            run(4, SRD_V, lambda g: S(f"s_mov_b32 s{sOff}, {(128*j + 32*g)*512 + q*128}"), lambda g: [16, 17, 18, 19], cfg.vpol, cfg.D_kv)
        else:
            q = it[1]
            D = cfg.D_w if all(x[0] == 'O' for x in order[idx:]) else cfg.D_kv
            if st.get("ocol") != it[2]:
                st["ocol"] = it[2]
                S(f"s_add_u32 s{sT2}, s{sRotO}, {it[2]}"); S(f"s_sub_u32 s3, s{sT2}, 7"); S(f"s_cselect_b32 s{sT2}, s{sT2}, s3")
                S(f"s_lshl_b32 s{sT2}, s{sT2}, 7")
            run(2, SRD_O, lambda g: S(f"s_add_u32 s{sOff}, s{sT2}, {(64*q + 32*g)*896}"), lambda g: [28, 29, 30, 31], cfg.opol0 if (it[2] == 0 and cfg.opol0 is not None) else cfg.opol, D)
        if it == cfg.tokrd:
            srd_f(P); tok_off(P)
            V("v_mov_b32 v53, s3", ["v53"])
            P.vmem(f"global_load_dword v54, v53, s[{sDbg}:{sDbg+1}]{cfg.tokpol}", ["v54"], ["v53"])
            st["c"] += 1; st["tok"] = st["c"]
        if it == Vi(3, 2) and cfg.arrmode != 'none':
            assert st["done"] >= st["tok"]
            P.lab("L_arr")
            V("v_cmp_eq_u32 vcc, 0, v54", ["vcc"], ["v54"])
            S("s_cbranch_vccnz L_arrx")
            T = Prog(); P.tail_blocks.append(T)
            T.lab("L_arrx")
            T.raw(f"global_load_dword v54, v53, s[{sDbg}:{sDbg+1}] sc1"); T.raw("s_waitcnt vmcnt(0)"); T.raw("s_branch L_arr")
        if cfg.earlybar or cfg.tick: need_barrier()
        if cfg.lst:
            if it in cfg.lst: stamp(P, cfg, 1 + cfg.lst.index(it))
        elif cfg.early:
            if it == Qi(0): stamp(P, cfg, 2)
            if it == Qi(3): stamp(P, cfg, 3)
        else:
            if it == Qi(13) and not cfg.tkst: stamp(P, cfg, 1)
            if it == Ki(15): stamp(P, cfg, 2)
            if it == Vi(3, 3): stamp(P, cfg, 3)
    if not cfg.lst: stamp(P, cfg, 4)
    if before_drain: st["c"] += before_drain()
    for it, e in ends:
        if e > st["pub"]:
            if e > st["done"]:
                st["done"] = e
                P.raw(f"s_waitcnt vmcnt({st['c']-e})", "wait")
            publish(st["done"]); st["pub"] = e
    r = {it: (12, e) for it, e in ends}
    r.update({it: (1036, e) for it, e in cop.items()})
    return r

class AddrReg:
    def __init__(self, reg): self.reg = reg; self.base = 0
RING = 224
VS = 32
VQ = 64
VP = 128
XB = 96
HIST = 32
def consumer(P, cfg, corder, loc, endidx, lastrel):
    S, V = P.salu, P.valu
    vm = {"n": 0}
    xidx = {}
    if cfg.tick:
        assert not (cfg.xdir or cfg.code2 or cfg.sm or cfg.touch)
        ldsinit(P)
    def xcol():
        S(f"s_lshl_b32 s{sOffX}, s{sRot}, 7")
        S(f"s_add_u32 s{sRot}, s{sRot}, 1"); S(f"s_cmp_eq_u32 s{sRot}, 7"); S(f"s_cselect_b32 s{sRot}, 0, s{sRot}")
    def xload(c, x):
        r = XB + 16 * c + 4 * x
        P.vmem(f"buffer_load_dwordx4 a[{r}:{r+3}], v24, {srd(SRD_X)}, s{sOffX} offen offset:{32*x}{cfg.xpol}", R("a", r, 4), ["v24"])
        vm["n"] += 1; xidx[(c, x)] = vm["n"]
    if cfg.xdir:
        V("v_and_b32 v36, 31, v0", ["v36"], ["v0"])
        V("v_lshrrev_b32 v37, 5, v0", ["v37"], ["v0"])
        S(f"s_mul_i32 s3, s{sWave}, {32*896}")
        V("v_mul_u32_u24 v24, 896, v36", ["v24"], ["v36"])
        V("v_lshl_add_u32 v37, v37, 4, s3", ["v37"], ["v37"])
        V("v_add_u32 v24, v24, v37", ["v24"], ["v24", "v37"])
    P.raw("s_waitcnt lgkmcnt(0)", "wait"); P.ds_q = []
    if cfg.xdir:
        srd_x(P)
        for c in range(cfg.xpre):
            xcol()
            for x in range(4): xload(c, x)
    if cfg.ncode and cfg.code2:
        S(f"s_getpc_b64 s[{sPc}:{sPc+1}]")
        P.lab("L_pc")
        S(f"s_sub_u32 s{sPc}, s{sPc}, L_pc-{NAME}_kernel"); S(f"s_subb_u32 s{sPc+1}, s{sPc+1}, 0")
        S("s_lshr_b32 s3, s2, 3"); S("s_lshl_b32 s3, s3, 11")
        V("v_and_b32 v6, 15, v0", ["v6"], ["v0"])
        V("v_lshl_add_u32 v6, v6, 7, s3", ["v6"], ["v6"])
        V(f"v_min_u32 v7, L_codeend-{NAME}_kernel-4, v6", ["v7"], ["v6"])
        P.vmem(f"global_load_dword a72, v7, s[{sPc}:{sPc+1}]", ["a72"], ["v7"])
        vm["n"] += 1
    if cfg.sm and cfg.smc:
        L = sm_list(cfg)
        sm_base(P, L[cfg.smc] - L[0])
        for off in L[:cfg.smc]: sm_load(P, cfg, off)
    if cfg.touch:
        srd_w(P); srd_x(P); srd_o(P)
        S(f"s_cmp_eq_u32 s{sWave}, 1"); S("s_cbranch_scc1 L_t1")
        S(f"s_cmp_eq_u32 s{sWave}, 2"); S("s_cbranch_scc1 L_t2")
        V("v_lshrrev_b32 v6, 2, v0", ["v6"], ["v0"]); V("v_lshlrev_b32 v6, 13, v6", ["v6"], ["v6"])
        V("v_and_b32 v7, 3, v0", ["v7"], ["v0"]); V("v_lshl_add_u32 v6, v7, 7, v6", ["v6"], ["v6", "v7"])
        S(f"s_mul_i32 s{sOff}, s{sB}, {56*8192}")
        for i in range(4 if cfg.wtouch else 0):
            P.vmem(f"buffer_load_dword a{64+i}, v6, {srd(SRD_W)}, s{sOff} offen{cfg.tpol}", [f"a{64+i}"], ["v6"])
            S(f"s_add_u32 s{sOff}, s{sOff}, {16*8192}")
        S("s_branch L_t2")
        P.lab("L_t1")
        V("v_lshlrev_b32 v6, 7, v0", ["v6"], ["v0"])
        S(f"s_and_b32 s{sOff}, s{sH}, 3"); S(f"s_mul_i32 s{sOff}, s{sOff}, {168*128}")
        for i in range(3):
            P.vmem(f"buffer_load_dword a{64+i}, v6, {srd(SRD_X)}, s{sOff} offen{cfg.tpol}", [f"a{64+i}"], ["v6"])
            S(f"s_add_u32 s{sOff}, s{sOff}, 8192")
        P.lab("L_t2")
    V("v_and_b32 v36, 31, v0", ["v36"], ["v0"])
    V("v_lshrrev_b32 v37, 5, v0", ["v37"], ["v0"])
    V("v_bfe_u32 v38, v0, 4, 1", ["v38"], ["v0"])
    V("v_bfe_u32 v39, v0, 2, 2", ["v39"], ["v0"])
    V("v_and_b32 v40, 3, v0", ["v40"], ["v0"])
    V("v_bfe_u32 v41, v0, 1, 1", ["v41"], ["v0"])
    V("v_and_b32 v42, 1, v0", ["v42"], ["v0"])
    V("v_lshl_add_u32 v41, v42, 1, v41", ["v41"], ["v41", "v42"])
    V("v_lshl_add_u32 v45, v37, 3, v39", ["v45"], ["v37", "v39"])
    V("v_lshlrev_b32 v45, 9, v45", ["v45"], ["v45"])
    V("v_lshl_add_u32 v45, v38, 5, v45", ["v45"], ["v38", "v45"])
    V("v_lshl_add_u32 v45, v41, 3, v45", ["v45"], ["v41", "v45"])
    for d3 in range(4):
        V(f"v_xor_b32 v44, {d3}, v39", ["v44"], ["v39"])
        V(f"v_lshl_add_u32 v{20+d3}, v44, 6, v45", [f"v{20+d3}"], ["v44", "v45"])
    S(f"s_lshl_b32 s3, s{sWave}, 12")
    V("v_lshlrev_b32 v43, 7, v36", ["v43"], ["v36"])
    V("v_add_u32 v43, s3, v43", ["v43"], ["v43"])
    V("v_bfe_u32 v42, v36, 1, 3", ["v42"], ["v36"])
    for s in range(0 if cfg.xdir else 4):
        V(f"v_add_u32 v44, {2*s}, v37", ["v44"], ["v37"])
        V("v_xor_b32 v44, v44, v42", ["v44"], ["v44", "v42"])
        V(f"v_lshl_add_u32 v{24+s}, v44, 4, v43", [f"v{24+s}"], ["v44", "v43"])
    V("v_and_b32 v42, 15, v36", ["v42"], ["v36"])
    V("v_lshlrev_b32 v43, 9, v36", ["v43"], ["v36"])
    for s7 in range(8):
        V(f"v_add_u32 v44, {2*s7}, v37", ["v44"], ["v37"])
        V("v_xor_b32 v44, v44, v42", ["v44"], ["v44", "v42"])
        V(f"v_lshl_add_u32 v{8+s7}, v44, 4, v43", [f"v{8+s7}"], ["v44", "v43"])
    V("v_lshl_add_u32 v42, v37, 2, v39", ["v42"], ["v37", "v39"])
    V("v_lshlrev_b32 v43, 7, v42", ["v43"], ["v42"])
    V("v_lshl_add_u32 v43, v38, 5, v43", ["v43"], ["v38", "v43"])
    V("v_lshrrev_b32 v44, 1, v39", ["v44"], ["v39"])
    V("v_lshl_add_u32 v43, v44, 6, v43", ["v43"], ["v44", "v43"])
    V("v_lshl_add_u32 v16, v40, 3, v43", ["v16"], ["v40", "v43"])
    V("v_xor_b32 v17, 64, v16", ["v17"], ["v16"])
    V("v_lshl_add_u32 v28, v41, 3, v43", ["v28"], ["v41", "v43"])
    V("v_xor_b32 v29, 64, v28", ["v29"], ["v28"])
    V("v_lshrrev_b32 v42, 2, v36", ["v42"], ["v36"])
    V("v_lshlrev_b32 v5, 9, v42", ["v5"], ["v42"])
    V("v_lshl_add_u32 v5, v37, 4, v5", ["v5"], ["v37", "v5"])
    V("v_lshl_add_u32 v5, v40, 5, v5", ["v5"], ["v40", "v5"])
    V("v_mov_b32 v4, 1", ["v4"])
    c = math.log2(math.e) / 16.0
    S(f"s_mov_b32 s{sC}, {hex(f32bits(c))}"); S(f"s_mov_b32 s{sNC}, {hex(f32bits(-c))}")
    if cfg.tick:
        P.lgkm0(); P.raw("s_barrier", "salu")
        P.ds("ds_read_b32 v3, v2 offset:2048", ["v3"], ["v2"])
        V("v_readfirstlane_b32 s2, v3", ["s2"], ["v3"])
        S("s_and_b32 s2, s2, 255")
        ptrs(P, "s2")
        decode(P, cfg)
    S(f"s_lshl_b32 s3, s{sGrp}, 4"); S(f"s_add_u32 s3, s3, s{sH}"); S(f"s_mul_i32 s3, s3, {PART}")
    mk_srd(P, SRD_P, sWs, "s3", PART)
    S(f"s_lshl_b32 s{sOffW}, s{sWave}, 12")
    srd_f(P)
    mk_srd(P, SRD_D, sDbg, None, 256)
    if cfg.tick: P.lgkm0()
    if cfg.otouch_at != -1 and not cfg.touch: srd_o(P)

    regs = {r: AddrReg(r) for r in range(8, 30)}
    def addr(reg, off):
        a = regs[reg]
        if not (0 <= off - a.base <= 65535 - 16):
            nb = (off // 65536) * 65536
            d = nb - a.base
            if d > 0: V(f"v_add_u32 v{reg}, {d}, v{reg}", [f"v{reg}"], [f"v{reg}"])
            else: V(f"v_subrev_u32 v{reg}, {-d}, v{reg}", [f"v{reg}"], [f"v{reg}"])
            a.base = nb
        return off - a.base
    def rd128(dst, reg, off):
        o = addr(reg, off)
        P.ds(f"ds_read_b128 {F('a', dst, 4)}, v{reg} offset:{o}", R('a', dst, 4), [f"v{reg}"])
    def rdtr(dst, reg, off):
        o = addr(reg, off)
        P.ds(f"ds_read_b64_tr_b16 {F('a', dst, 2)}, v{reg} offset:{o}", R("a", dst, 2), [f"v{reg}"])

    OFR = [VS, VS + 16, VQ, VQ + 32]
    def oacc(n, nt): return ("v", VP + 32 * (n & 1) + 16 * nt) if cfg.nin == 0 else ("a", 32 * n + 16 * nt)
    M = []
    for it in corder:
        sb = loc[(it, 'm')]
        if it[0] == 'Q':
            i = it[1]
            seq = [(ks, dt) for ks in range(2) for dt in range(8)] if i < 13 else [(ks, dt) for dt in range(8) for ks in range(2)]
            for ks, dt in seq:
                def rd(rb, sb=sb, ks=ks, dt=dt):
                    for pp in range(2): rdtr(rb + 2 * pp, 20 + (dt & 3), sb + ks * 8192 + pp * 2048 + 256 * (dt >> 2))
                xb = 16 * ((i // 2) & 1) + 4 * (2 * (i & 1) + ks)
                if cfg.xdir: xb = XB + 16 * (i // 2) + 4 * (2 * (i & 1) + ks)
                d = ("v", VP + 16 * dt)
                M.append(dict(item=it, rd=rd, d=d, b=("a", xb), c=None if (i == 0 and ks == 0) else d))
        elif it[0] == 'K':
            t = it[1]
            for s in range(16):
                def rd(rb, sb=sb, s=s): rd128(rb, 8 + (s & 7), sb + 256 * (s >> 3))
                d = ("v", VS + 16 * (t & 1))
                M.append(dict(item=it, rd=rd, d=d, b=("v", VQ + 4 * s), c=None if s == 0 else d))
        elif it[0] == 'V':
            q, j = it[1], it[2]
            seq = [(ks, dt) for ks in range(8) for dt in range(2)] if it != Vi(3, 3) else [(ks, dt) for dt in range(2) for ks in range(8)]
            for ks, dt in seq:
                def rd(rb, sb=sb, ks=ks, dt=dt):
                    for pp in range(2): rdtr(rb + 2 * pp, 16 + dt, sb + ks * 2048 + pp * 1024)
                d = ("v", VQ + 32 * (q & 1) + 16 * dt)
                M.append(dict(item=it, rd=rd, d=d, b=("v", VP + 32 * j + 4 * ks), c=None if (j == 0 and ks == 0) else d))
        else:
            q, n = it[1], it[2]
            seq = [(kk, nt) for kk in range(4) for nt in range(2)] if (q < 3 or (n == 0 and cfg.nin == 3)) else [(kk, nt) for nt in range(2) for kk in range(4)]
            for kk, nt in seq:
                def rd(rb, sb=sb, kk=kk, nt=nt):
                    for pp in range(2): rdtr(rb + 2 * pp, 28 + nt, sb + kk * 2048 + pp * 1024)
                d = oacc(n, nt)
                M.append(dict(item=it, rd=rd, d=d, nt=nt, b=("v", OFR[q] + 4 * kk), c=None if (q == 0 and kk == 0) else d))
    nl = 8 * (4 - cfg.nin)
    if cfg.lastsplit: M[-nl:] = [m for m in M[-nl:] if m["nt"] == 0] + [m for m in M[-nl:] if m["nt"] == 1]
    N = len(M)
    assert N == 960
    first = {}
    for i, m in enumerate(M): first.setdefault(m["item"], i)
    fill = {i: [] for i in range(-1, N + 1)}
    pre = {i: [] for i in range(N)}
    def spread(ops, g0, g1):
        n = g1 - g0 + 1
        for j, op in enumerate(ops):
            fill[g0 + (j * n) // len(ops)].append(op)
    def vop(text, w, r): return lambda: V(text, w, r)
    def cvt(dst, a): return vop(f"v_cvt_pk_bf16_f32 v{dst}, v{a}, v{a+1}", [f"v{dst}"], [f"v{a}", f"v{a+1}"])
    def accrd(dst, a): return vop(f"v_accvgpr_read_b32 v{dst}, a{a}", [f"v{dst}"], [f"a{a}"])
    f13 = first[Qi(13)]
    for dt in range(8):
        spread([cvt(VQ + 8 * dt + j, VP + 16 * dt + 2 * j) for j in range(8)], f13 + 2 * dt + 4, f13 + 2 * dt + 5)
    def maxops(t):
        sb = VS + 16 * (t & 1)
        ops = []
        for j in range(8):
            a = sb + 2 * j
            if t == 0 and j == 0: ops.append(vop(f"v_max_f32 v6, v{a}, v{a+1}", ["v6"], [f"v{a}", f"v{a+1}"]))
            else: ops.append(vop(f"v_max3_f32 v6, v6, v{a}, v{a+1}", ["v6"], ["v6", f"v{a}", f"v{a+1}"]))
        if t == 15:
            ops.append(vop("v_mov_b32 v18, v6", ["v18"], ["v6"]))
            ops.append(vop("v_permlane32_swap_b32 v18, v6", ["v18", "v6"], ["v18", "v6"]))
            ops.append(vop("v_max_f32 v6, v18, v6", ["v6"], ["v18", "v6"]))
        nm, po = 30 + (t & 1), 30 + ((t + 1) & 1)
        ops.append(vop(f"v_mul_f32 v18, s{sNC}, v6", ["v18"], ["v6"]))
        ops.append(vop(f"v_floor_f32 v{nm}, v18", [f"v{nm}"], ["v18"]))
        return ops
    def resc(t):
        nm, po = 30 + (t & 1), 30 + ((t + 1) & 1)
        ops = []
        if t > 0:
            ops.append(vop(f"v_sub_f32 v18, v{nm}, v{po}", ["v18"], [f"v{nm}", f"v{po}"]))
            ops.append(vop("v_cvt_i32_f32 v18, v18", ["v18"], ["v18"]))
            ops.append(vop("v_ldexp_f32 v7, v7, v18", ["v7"], ["v7", "v18"]))
        if t < 15:
            ops.append(vop(f"v_accvgpr_write_b32 a{HIST+t}, v{nm}", [f"a{HIST+t}"], [f"v{nm}"]))
        return ops
    def pops(t):
        sb = VS + 16 * (t & 1); nm = 30 + (t & 1)
        ops = []
        for h in range(4):
            e = range(sb + 4 * h, sb + 4 * h + 4)
            for a in e: ops.append(vop(f"v_fma_f32 v{a}, v{a}, s{sC}, v{nm}", [f"v{a}"], [f"v{a}", f"v{nm}"]))
            for a in e: ops.append(lambda a=a: P.trans(f"v_exp_f32 v{a}, v{a}", [f"v{a}"], [f"v{a}"]))
            if h > 0: ops += post(t, h - 1)
        ops += post(t, 3)
        return ops
    def post(t, h):
        sb = VS + 16 * (t & 1)
        ops = []
        for j in (2 * h, 2 * h + 1):
            a = sb + 2 * j
            ops.append(cvt(VP + 8 * t + j, a))
            if t == 0 and j == 0:
                ops.append(vop(f"v_add_f32 v7, v{a}, v{a+1}", ["v7"], [f"v{a}", f"v{a+1}"]))
            else:
                ops.append(vop(f"v_add_f32 v7, v7, v{a}", ["v7"], ["v7", f"v{a}"]))
                ops.append(vop(f"v_add_f32 v7, v7, v{a+1}", ["v7"], ["v7", f"v{a+1}"]))
        return ops
    for t in range(15):
        f = first[Ki(t + 1)]
        spread(maxops(t) + resc(t) + pops(t), f + 2, f + 15)
    def corr(t):
        ops = [accrd(19, HIST + t),
               vop("v_sub_f32 v19, v19, v31", ["v19"], ["v19", "v31"]),
               vop("v_cvt_u32_f32 v19, v19", ["v19"], ["v19"]),
               vop("v_min_u32 v19, 0xff, v19", ["v19"], ["v19"]),
               vop("v_mul_u32_u24 v19, 0x800080, v19", ["v19"], ["v19"])]
        for j in range(8):
            a = VP + 8 * t + j
            ops.append(vop(f"v_pk_sub_u16 v{a}, v{a}, v19 clamp", [f"v{a}"], [f"v{a}", "v19"]))
        return ops
    fv0 = first[Vi(0, 0)]
    pre[fv0] += maxops(15) + corr(0)
    if not cfg.cst: pre[fv0].append(lambda: stamp(P, cfg, 3))
    last = resc(15) + pops(15)
    for t in range(1, 15):
        spread(corr(t), fv0 + 4 * (t - 1), fv0 + 4 * (t - 1) + 2)
    spread(last, fv0 + 1, fv0 + 54)
    fin = [vop("v_mov_b32 v18, v7", ["v18"], ["v7"]),
           vop("v_permlane32_swap_b32 v18, v7", ["v18", "v7"], ["v18", "v7"]),
           vop("v_add_f32 v7, v18, v7", ["v7"], ["v18", "v7"]),
           lambda: P.trans("v_rcp_f32 v6, v7", ["v6"], ["v7"])]
    spread(fin, fv0 + 57, fv0 + 60)
    def onorm(q, dt):
        ab = VQ + 32 * (q & 1) + 16 * dt; fb = OFR[q] + 8 * dt
        ops = []
        for j in range(8):
            a = ab + 2 * j
            ops.append(vop(f"v_mul_f32 v{a}, v{a}, v6", [f"v{a}"], [f"v{a}", "v6"]))
            ops.append(vop(f"v_mul_f32 v{a+1}, v{a+1}, v6", [f"v{a+1}"], [f"v{a+1}", "v6"]))
            ops.append(cvt(fb + j, a))
        return ops
    for q in range(3):
        f = first[Vi(q + 1, 0)]
        spread(onorm(q, 0) + onorm(q, 1), f + 2, f + 14)
    f33 = first[Vi(3, 3)]
    spread(onorm(3, 0), f33 + 10, f33 + 14)
    fo3 = first[Oi(cfg.nin, 0)]
    spread(onorm(3, 1), fo3 + 1, fo3 + (3 if cfg.nin == 3 else 6))
    if cfg.otouch_at != -1:
        f = first[cfg.otouch_at] if cfg.otouch_at != 'start' else -1
        def otouch(pol=cfg.otpol):
            S(f"s_mul_i32 s{sOff}, s{sB}, {32*896}"); S(f"s_mul_i32 s3, s{sWave}, {75*128}"); S(f"s_add_u32 s{sOff}, s{sOff}, s3")
            V("v_lshlrev_b32 v19, 7, v0", ["v19"], ["v0"])
            P.vmem(f"buffer_load_dword a64, v19, {srd(SRD_O)}, s{sOff} offen{pol}", ["a64"], ["v19"])
            V(f"v_min_u32 v18, {10*128}, v19", ["v18"], ["v19"])
            S(f"s_add_u32 s{sOff}, s{sOff}, 8192")
            P.vmem(f"buffer_load_dword a65, v18, {srd(SRD_O)}, s{sOff} offen{pol}", ["a65"], ["v18"])
            vm["n"] += 2
        for it2, pol2 in cfg.ot2: fill[first[it2] + 1].append(lambda pol2=pol2: otouch(pol2))
        if f >= 0: f += 10
        if cfg.otl:
            def cond(bb):
                S(f"s_cmp_lg_u32 s{sB}, {bb}"); S(f"s_cbranch_scc1 L_ot{bb}")
                otouch(); vm["n"] -= 2
                P.lab(f"L_ot{bb}")
            for bb, it in enumerate(cfg.otl): fill[first[it] + cfg.otd].append(lambda bb=bb: cond(bb))
        else: fill[f].append(otouch)
    if cfg.xdir:
        for c in range(cfg.xpre, 7):
            f = first[Qi(cfg.xstep * (c - cfg.xpre))]
            fill[f + 1].append(xcol)
            for x in range(4): fill[f + 2 + 2 * x].append(lambda c=c, x=x: xload(c, x))
        for i in range(14):
            pre[first[Qi(i)]].append(lambda i=i: P.raw(f"s_waitcnt vmcnt({vm['n'] - xidx[(i // 2, 2 * (i & 1) + 1)]})", "wait"))
    def lead(lbl):
        S(f"s_and_b32 s3, s{sB}, 3"); S(f"s_lshl_b32 s3, s3, 2"); S(f"s_add_u32 s3, s3, 16")
        S(f"s_lshl_b32 s20, s{sWave}, 4"); S(f"s_add_u32 s20, s20, s{sH}")
        S(f"s_cmp_lg_u32 s20, s3"); S(f"s_cbranch_scc1 {lbl}")
    def clear():
        lead("L_nc")
        V("v_lshlrev_b32 v19, 4, v0", ["v19"], ["v0"])
        V("v_mov_b32 v32, 0", ["v32"])
        for i in range(2):
            P.vmem(f"buffer_store_dwordx4 v[32:35], v19, {srd(SRD_F)}, 0 offen offset:{1024*i} sc1", [], ["v32", "v19"])
        P.lab("L_nc")
    def report():
        lead("L_nr")
        tok_off(P)
        V(f"v_lshl_add_u32 v19, v0, 8, s3", ["v19"], ["v0"])
        P.raw("s_waitcnt vmcnt(0)", "wait")
        P.vmem(f"buffer_store_dword v4, v19, {srd(SRD_D)}, 0 offen sc1", [], ["v4", "v19"])
        P.lab("L_nr")
    fill[-1].append(clear)
    fill[first[cfg.tok_at]].append(report)
    if cfg.nin: pre[first[Oi(0, 0)]].append(lambda: P.raw("s_waitcnt vmcnt(0)", "wait"))
    stored = {}
    def epi(n, nt):
        af, ab = oacc(n, nt)
        tb = VP + 24 * ((2 * n + nt) % 4)
        ops = []
        for j in range(2):
            if af == "a":
                for x in range(8): ops.append(accrd(tb + 8 * j + x, ab + 8 * j + x))
                dd = tb + 16 + 4 * j; src = tb + 8 * j
            else:
                dd = VP + 64 + 8 * ((2 * n + nt) % 8) + 4 * j; src = ab + 8 * j
            for x in range(4): ops.append(cvt(dd + x, src + 2 * x))
            def st_(dd=dd, j=j):
                if not cfg.nostore: P.vmem(f"buffer_store_dwordx4 v[{dd}:{dd+3}], v5, {srd(SRD_P)}, s{sOff} offen offset:{(2*nt+j)*128} sc1",
                       [], R("v", dd, 4) + ["v5"], wide_store=R("v", dd, 4))
                vm["n"] += 1; stored[n] = vm["n"]
            ops.append(st_)
        return ops
    def epi_off():
        S(f"s_mul_i32 s{sOff}, s{sRotO}, 12288"); S(f"s_add_u32 s{sOff}, s{sOff}, s{sOffW}")
        S(f"s_add_u32 s{sRotO}, s{sRotO}, 1"); S(f"s_cmp_eq_u32 s{sRotO}, 7"); S(f"s_cselect_b32 s{sRotO}, 0, s{sRotO}")
    def flagsetup():
        S(f"s_lshl_b32 s3, s{sH}, 7")
        V(f"v_lshl_add_u32 v19, v0, 4, s3", ["v19"], ["v0"])
        V(f"v_cmp_gt_u32 s[{sOffX}:{sOffX+1}], 8, v0", [f"s{sOffX}"], ["v0"])
        V(f"v_cndmask_b32 v19, v2, v19, s[{sOffX}:{sOffX+1}]", ["v19"], ["v2", "v19", f"s{sOffX}"])
        V(f"v_lshl_add_u32 v30, v0, 4, v2", ["v30"], ["v0", "v2"])
    def flag(k):
        c = cfg.ck[k]
        assert k == 0 or cfg.noflag or vm[k - 1] <= stored[c]
        P.raw(f"s_waitcnt vmcnt({vm['n'] - stored[c]})", "wait")
        if k == len(cfg.ck) - 1 and not cfg.cst: stamp(P, cfg, 5)
        if cfg.noflag: return
        V(f"v_mov_b32 v8, {k+1}", ["v8"])
        P.ds(f"ds_add_rtn_u32 v18, v30, v4 offset:{1024+4*k}", ["v18"], ["v30", "v4"])
    def flag2(k):
        if cfg.noflag: return
        V(f"v_cmp_eq_u32 s[{sOffX}:{sOffX+1}], 2, v18", [f"s{sOffX}"], ["v18"])
        V(f"v_cndmask_b32 v18, v2, v19, s[{sOffX}:{sOffX+1}]", ["v18"], ["v2", "v19", f"s{sOffX}"])
        P.vmem(f"buffer_store_dwordx4 v[8:11], v18, {srd(SRD_F)}, 0 offen sc1", [], ["v18", "v8"], wide_store=R("v", 8, 4))
        vm["n"] += 1; vm[k] = vm["n"]
    fill[fo3 + 7].append(flagsetup)
    tend = {}
    for i in range(fo3, N): tend[(M[i]["item"][2], M[i]["nt"])] = i
    w = 4 if cfg.nin else 2
    lastfill = fo3 + 7
    for n in range(7):
        for nt in range(2):
            g0 = max(tend[(n, nt)] + 2, lastfill + 1); g1 = g0 + w - 1
            ops = ([epi_off] if nt == 0 else []) + epi(n, nt)
            if g1 > N - 1: g1 = N - 1
            if g0 > N - 1: g0 = N - 1
            spread(ops, g0, g1); lastfill = g1
    for k, c in enumerate(cfg.ck):
        at = min(fo3 + nl * (c + 1 + cfg.cklag) + 1, N - 1)
        fill[at].append(lambda k=k: flag(k))
        fill[min(at + 3, N - 1)].append(lambda k=k: flag2(k))
    if cfg.cst:
        for k, it in enumerate(cfg.cst): pre[first[it]].append(lambda k=k: stamp(P, cfg, 1 + k))
    else:
        pre[first[Ki(0)]].append(lambda: stamp(P, cfg, 2))
        pre[fo3].append(lambda: stamp(P, cfg, 4))

    stubs = Prog(); P.tail_blocks.append(stubs)
    seen = {12: 0, 1036: 0}
    chk = {}
    for it in corder:
        w, e = endidx[it]
        if e > seen[w] and not cfg.nosync:
            chk[it] = (w, e); seen[w] = e
    def flagread(it): P.ds(f"ds_read_b32 v3, v2 offset:{chk[it][0]}", ["v3"], ["v2"])
    def cmp(it): V(f"v_cmp_le_u32 vcc, {chk[it][1]}, v3", ["vcc"], ["v3"])
    def branch(it):
        nm = lname(it)
        S(f"s_cbranch_vccz L_cs{nm}")
        P.lab(f"L_cb{nm}")
        stubs.lab(f"L_cs{nm}")
        stubs.raw(f"ds_read_b32 v3, v2 offset:{chk[it][0]}"); stubs.raw("s_waitcnt lgkmcnt(0)")
        stubs.raw(f"v_cmp_le_u32 vcc, {chk[it][1]}, v3"); stubs.raw(f"s_cbranch_vccz L_cs{nm}"); stubs.raw(f"s_branch L_cb{nm}")
    ci = {it: i for i, it in enumerate(corder)}
    xq = []
    def starts(j): return j < N and first[M[j]["item"]] == j
    def reads(j):
        m = M[j]; it = m["item"]
        if first[it] == j:
            if 0 < ci[it] <= lastrel + 1: P.ds("ds_add_u32 v1, v4", [], ["v1", "v4"])
            if it in chk: branch(it)
            if j == 0 and cfg.s1at == 'first' and not cfg.cst: stamp(P, cfg, 1)
            if it[0] == 'Q' and it[1] % 2 == 0 and not cfg.xdir:
                for s in range(4): xq.append((16 * ((it[1] // 2) & 1) + 4 * s, 24 + s, loc[(it, 'x')]))
        if xq: rd128(*xq.pop(0))
        m["rd"](RING + 4 * (j % 8))
        if starts(j + 4) and M[j + 4]["item"] in chk: flagread(M[j + 4]["item"])
        if starts(j + 1) and M[j + 1]["item"] in chk: cmp(M[j + 1]["item"])
    for op in fill[-1]: op()
    if not cfg.tick: P.raw("s_barrier", "salu")
    if corder[0] in chk:
        flagread(corder[0]); cmp(corder[0])
    for j in range(cfg.PD): reads(j)
    for i, m in enumerate(M):
        for op in pre[i]: op()
        if cfg.pairwait and i % 2 == 0 and i + 1 < N:
            P._need(R("a", RING + 4 * ((i + 1) % 8), 4))
        P.mfma(m["d"], ("a", RING + 4 * (i % 8)), m["b"], m["c"])
        if i + cfg.PD < N: reads(i + cfg.PD)
        for op in fill[i]: op()

def red_setup(P, cfg):
    S, V = P.salu, P.valu
    S(f"s_mul_i32 s3, s{sGrp}, {PART*16}")
    mk_srd(P, SRD_G, sWs, "s3", PART * 16)
    mk_srd(P, SRD_OUT, sOut, None, 8 * 96 * 896 * 2)
    V("v_lshrrev_b32 v41, 4, v0", ["v41"], ["v0"])
    V(f"v_mul_u32_u24 v40, {PART}, v41", ["v40"], ["v41"])
    V("v_and_b32 v42, 15, v0", ["v42"], ["v0"])
    V("v_lshl_add_u32 v40, v42, 4, v40", ["v40"], ["v42", "v40"])
    V("v_bfe_u32 v44, v0, 1, 2", ["v44"], ["v0"])
    V("v_mul_u32_u24 v43, 1792, v44", ["v43"], ["v44"])
    V("v_bfe_u32 v45, v0, 3, 1", ["v45"], ["v0"])
    V("v_lshl_add_u32 v43, v45, 5, v43", ["v43"], ["v45", "v43"])
    V("v_and_b32 v46, 1, v0", ["v46"], ["v0"])
    V("v_lshl_add_u32 v43, v46, 4, v43", ["v43"], ["v46", "v43"])
    V("v_lshl_add_u32 v43, v41, 3, v43", ["v43"], ["v41", "v43"])
    V("v_lshlrev_b32 v46, 4, v46", ["v46"], ["v46"])
    V("v_mov_b32 v47, 0x3f80", ["v47"])
    V("v_lshlrev_b32 v46, v46, v47", ["v46"], ["v46", "v47"])
    V("v_bfe_u32 v47, v0, 1, 3", ["v47"], ["v0"])
    for x in range(4):
        V(f"v_cmp_eq_u32 vcc, {x}, v47", ["vcc"], ["v47"])
        V(f"v_cndmask_b32 v{48+x}, 0, v46, vcc", [f"v{48+x}"], ["v46", "vcc"])
    V("v_lshlrev_b32 v52, 7, v42", ["v52"], ["v42"])
    S(f"s_mul_i32 s{sT3}, s{sB}, {96*1792}"); S(f"s_mul_i32 s3, s{sWhich}, 896"); S(f"s_add_u32 s{sT3}, s{sT3}, s3")
    for i in range(3):
        S(f"s_mul_i32 s3, s{sH}, 3"); S(f"s_add_u32 s3, s3, {i}")
        S(f"s_and_b32 s{90+i}, s3, 1"); S(f"s_lshl_b32 s{90+i}, s{90+i}, 6")
        S(f"s_lshr_b32 s3, s3, 1"); S(f"s_mul_i32 s3, s3, 7168")
        S(f"s_add_u32 s{90+i}, s{90+i}, s3"); S(f"s_add_u32 s{90+i}, s{90+i}, s{sT3}")
    S(f"s_mul_i32 s{sOffW}, s{sH}, 768")

def flag_read(P, k):
    P.raw(f"buffer_load_dword v55, v52, {srd(SRD_F)}, 0 offen sc1", "vmem")

def reduce4(P, cfg):
    S, V = P.salu, P.valu
    def col(n, dst):
        S(f"s_add_u32 s{dst}, s{sRotO}, {n}"); S(f"s_sub_u32 s3, s{dst}, 7"); S(f"s_cselect_b32 s{dst}, s{dst}, s3")
    lo = 0; rr = 0
    for k, c in enumerate(cfg.ck):
        steps = list(range(lo, c + 1)); lo = c + 1
        assert len(steps) <= 4
        if cfg.own:
            P.lab(f"L_own{k}")
            P.raw(f"ds_read_b32 v55, v2 offset:{1024+4*k}", "other"); P.raw("s_waitcnt lgkmcnt(0)", "wait")
            V(f"v_cmp_gt_u32 vcc, 3, v55", ["vcc"], ["v55"])
            S(f"s_cbranch_vccnz L_own{k}")
        P.lab(f"L_fl{k}")
        flag_read(P, k); P.raw("s_waitcnt vmcnt(0)", "wait")
        V(f"v_cmp_ge_u32 vcc, {k}, v55", ["vcc"], ["v55"])
        S(f"s_cbranch_vccz L_flok{k}")
        if cfg.pollgap:
            S(f"s_mov_b32 s3, {cfg.pollgap}")
            P.lab(f"L_fg{k}")
            P.raw("s_nop 15", "other"); S("s_sub_u32 s3, s3, 1"); S("s_cmp_lg_u32 s3, 0"); S(f"s_cbranch_scc1 L_fg{k}")
        S(f"s_branch L_fl{k}")
        P.lab(f"L_flok{k}")
        if not cfg.lst: stamp(P, cfg, 5 if k == 0 else 6)
        regs = []
        for n in steps:
            col(n, sT1)
            S(f"s_mul_i32 s{sOff}, s{sT1}, 12288"); S(f"s_add_u32 s{sOff}, s{sOff}, s{sOffW}")
            for g in range(4):
                for i in range(3):
                    r = 64 + 4 * (rr % 48); rr += 1
                    P.raw(f"buffer_load_dwordx4 v[{r}:{r+3}], v40, {srd(SRD_G)}, s{sOff} offen offset:{256*i} sc1", "vmem")
                    regs.append(r)
                if g < 3: S(f"s_add_u32 s{sOff}, s{sOff}, {4*PART}")
        behind = 0
        nst = 0
        for si, n in enumerate(steps):
            ab = 8 + 12 * (si & 1)
            for g in range(4):
                for i in range(3):
                    x = 12 * si + 3 * g + i
                    r = regs[x]; acc = ab + 4 * i
                    P.raw(f"s_waitcnt vmcnt({len(regs) - 1 - x + behind + nst})", "wait")
                    P.raw(f"v_mfma_f32_16x16x32_bf16 v[{acc}:{acc+3}], v[48:51], v[{r}:{r+3}], {'0' if g == 0 else f'v[{acc}:{acc+3}]'}", "other")
            col(n, sT1)
            S(f"s_lshl_b32 s{sT1}, s{sT1}, 7")
            P.raw("s_nop 4", "other")
            S("s_mov_b32 exec_hi, 0")
            for i in range(3):
                acc = ab + 4 * i; d = 56 + 2 * i
                if i == 2: P.raw("s_nop 1", "other")
                P.raw(f"v_cvt_pk_bf16_f32 v{d}, v{acc}, v{acc+1}", "other")
                P.raw(f"v_cvt_pk_bf16_f32 v{d+1}, v{acc+2}, v{acc+3}", "other")
                S(f"s_add_u32 s3, s{90+i}, s{sT1}")
                P.raw(f"buffer_store_dwordx2 v[{d}:{d+1}], v43, {srd(SRD_OUT)}, s3 offen{cfg.outpol}", "vmem")
                nst += 1
            S("s_mov_b32 exec_hi, -1")

def write_stamps(P, cfg):
    if not cfg.stamps: return
    S, V = P.salu, P.valu
    if cfg.spin:
        n, k, w = cfg.spin
        P.raw("s_waitcnt vmcnt(0)", "wait")
        stamp(P, cfg, 7)
        P.raw("s_waitcnt lgkmcnt(0)", "wait")
        S(f"s_cmp_lg_u32 s{sWave}, {w}"); S("s_cbranch_scc1 L_end")
        S(f"s_add_u32 s20, s{sStamp + 2 * (k or 0)}, {n}")
        P.lab("L_spin")
        P.raw("s_nop 15", "other"); P.raw("s_nop 15", "other")
        P.raw("s_memrealtime s[22:23]", "salu"); P.raw("s_waitcnt lgkmcnt(0)", "wait")
        S("s_sub_u32 s3, s22, s20"); S("s_cmp_lt_i32 s3, 0"); S("s_cbranch_scc1 L_spin")
        return
    P.raw("s_waitcnt vmcnt(0)", "wait")
    stamp(P, cfg, 7)
    P.raw("s_waitcnt lgkmcnt(0)", "wait")
    S(f"s_cmp_eq_u32 s{sWave}, 1"); S("s_cbranch_scc1 L_end")
    S(f"s_cmp_eq_u32 s{sWave}, 2"); S("s_cbranch_scc1 L_end")
    S(f"s_add_u32 s{sWs}, s{sWs}, 0x8000000"); S(f"s_addc_u32 s{sWs+1}, s{sWs+1}, 0")
    S(f"s_lshl_b32 s3, s2, 7"); S(f"s_and_b32 s{sT1}, s{sWave}, 1"); S(f"s_lshl_b32 s{sT1}, s{sT1}, 6"); S(f"s_add_u32 s3, s3, s{sT1}")
    V("v_mov_b32 v6, s3", ["v6"])
    for r in range(16): V(f"v_mov_b32 v{8+r}, s{sStamp+r}", [f"v{8+r}"])
    for k in range(4):
        P.raw(f"global_store_dwordx4 v6, v[{8+4*k}:{11+4*k}], s[{sWs}:{sWs+1}] offset:{16*k}", "vmem")

def gen(cfg, verbose=False):
    corder = cons_order(cfg)
    ci = {it: i for i, it in enumerate(corder)}
    order = issue_order(cfg)
    assert sorted(citem(x) for x in order if x[0] not in 'TR') == sorted(corder)
    assert len(cfg.ck) <= 3
    loc, need = alloc(order, ci, 0 if cfg.xdir else cfg.nxb)
    if verbose:
        print(" ".join(f"{lname(it)}@{loc.get((citem(it),'m'),-UNIT)//UNIT}<{lname(corder[need[it]]) if need[it]>=0 else '-'}" for it in order))
    lastrel = max(need.values())
    assert lastrel + 1 <= ci[Oi(cfg.nin, 6)]
    P = Prog()
    prologue(P, cfg)
    def bd():
        red_setup(P, cfg); return 0
    endidx = loader(P, cfg, order, loc, need, bd)
    if not cfg.nored: reduce4(P, cfg)
    P.salu("s_branch L_fin")
    P.lab("L_cons")
    consumer(P, cfg, corder, loc, endidx, lastrel)
    P.lab("L_fin")
    write_stamps(P, cfg)
    P.lab("L_end")
    P.raw("s_endpgm", "salu")
    P.finalize()
    body = P.text()
    for Q in P.tail_blocks:
        Q.finalize(); body += "\n" + Q.text()
    hdr = [f"; fused attention blocks A|B: one workgroup per (block, batch, head); waves 0-2 compute, wave 3 streams",
           "; @launch grid=(256,1,1) block=(256,1,1) lds=163840",
           '.amdgcn_target "amdgcn-amd-amdhsa--gfx950"', ".text", f".globl {NAME}_kernel", ".p2align 8",
           f".type {NAME}_kernel,@function", f"{NAME}_kernel:"]
    ftr = ["  s_endpgm", "L_codeend:", '.section .rodata,"a"', ".p2align 6", f".amdhsa_kernel {NAME}_kernel",
           "  .amdhsa_next_free_vgpr 512", "  .amdhsa_next_free_sgpr 101", "  .amdhsa_accum_offset 256",
           "  .amdhsa_group_segment_fixed_size 0", "  .amdhsa_kernarg_size 104", "  .amdhsa_user_sgpr_count 2",
           "  .amdhsa_user_sgpr_kernarg_segment_ptr 1", "  .amdhsa_system_sgpr_workgroup_id_x 1", ".end_amdhsa_kernel"]
    return "\n".join(hdr) + "\n" + body + "\n" + "\n".join(ftr) + "\n", P

if __name__ == "__main__":
    out = sys.argv[1]
    kw = {}
    for a in sys.argv[2:]:
        k, v = a.split("=", 1)
        kw[k] = eval(v)
    txt, P = gen(Cfg(**kw), verbose=True)
    open(out, "w").write(txt)
    print(out, len(txt), "bytes", dict(P.stats()))
```
